```python
import torch

def _softmax(x, axis=-1):
    return torch.softmax(x, dim=axis)
def _gelu(x):
    return torch.nn.functional.gelu(x, approximate="tanh")
def _silu(x):
    return torch.nn.functional.silu(x)
def _sigmoid(x):
    return torch.sigmoid(x)
def _layernorm(x, axis=-1, eps=1e-5):
    m = x.mean(dim=axis, keepdim=True)
    v = x.var(dim=axis, keepdim=True, unbiased=False)
    return (x - m) / torch.sqrt(v + eps)
def _scatter_add(tgt, idx, src, axis=0):
    return tgt.clone().index_add_(axis, idx, src)
def _segment_sum(src, seg, n):
    out = torch.zeros((n,) + src.shape[1:], dtype=src.dtype)
    return out.index_add_(0, seg, src)
def _pad(x, pw):
    flat = tuple(v for pair in reversed(pw) for v in pair)
    return torch.nn.functional.pad(x, flat)

kernel_name = 'parallel_sum__softmax_full_mha__glu_gated_bilinear__prompt'

def setup_inputs():

    _w = (lambda a: (lambda t: t.to(torch.bfloat16) if t.is_floating_point() else t)(torch.as_tensor(a)))
    def _A_setup():
        B, S, D = 1, 2048, 512
        return {
            "x": _w((lambda *s: torch.randn(*s, dtype=torch.bfloat16) * 0.05)(B, S, D)),
            "wqkv": _w((lambda *s: torch.randn(*s, dtype=torch.bfloat16) * 0.05)(D, 3 * D)),
            "wo": _w((lambda *s: torch.randn(*s, dtype=torch.bfloat16) * 0.05)(D, D)),
        }
    _A_in = _A_setup()

    def _B_setup():
        B, S, D, F = 1, 2048, 512, 1792
        return {
            "x": _w((lambda *s: torch.randn(*s, dtype=torch.bfloat16) * 0.05)(B, S, D)),
            "w_gate": _w((lambda *s: torch.randn(*s, dtype=torch.bfloat16) * 0.4)(D, F) * (D ** -0.5)),
            "w_up": _w((lambda *s: torch.randn(*s, dtype=torch.bfloat16) * 0.4)(D, F) * (D ** -0.5)),
            "w_down": _w((lambda *s: torch.randn(*s, dtype=torch.bfloat16) * 0.4)(F, D) * (F ** -0.5)),
        }
    _B_in = _B_setup()

    return {
        "A_x": _A_in["x"],
        "A_wqkv": _A_in["wqkv"],
        "A_wo": _A_in["wo"],
        "B_x": _B_in["x"],
        "B_w_gate": _B_in["w_gate"],
        "B_w_up": _B_in["w_up"],
        "B_w_down": _B_in["w_down"],
    }

def reference(A_x, A_wqkv, A_wo, B_x, B_w_gate, B_w_up, B_w_down):
    def _A_ref(x, wqkv, wo):
        B, S, D = x.shape
        H = 32; Dh = D // H
        qkv = (lambda x, *d: x.permute(*d))((x @ wqkv).reshape(B, S, 3, H, Dh), 2, 0, 3, 1, 4)
        q, k, v = qkv[0], qkv[1], qkv[2]
        scale = Dh ** -0.5
        scores = torch.einsum("bhqd,bhkd->bhqk", q, k) * scale
        p = _softmax(scores, axis=-1)
        o = torch.einsum("bhqk,bhkd->bhqd", p, v)
        return (lambda x, *d: x.permute(*d))(o, 0, 2, 1, 3).reshape(B, S, D) @ wo

    def _B_ref(x, w_gate, w_up, w_down):
        g = torch.einsum("bsd,df->bsf", x, w_gate)
        u = torch.einsum("bsd,df->bsf", x, w_up)
        h = g * u
        return torch.einsum("bsf,fd->bsd", h, w_down)

    x = A_x
    xn = _layernorm(x, axis=-1)
    return x + _A_ref(xn, A_wqkv, A_wo) + _B_ref(xn, B_w_gate, B_w_up, B_w_down)
```

```python
class Asm:
    def __init__(self):
        self.lines = []
        self.uid = 0
    def __call__(self, s=""):
        for l in s.split("\n"):
            l = l.strip()
            if not l: continue
            if l.endswith(":") and not l.startswith(";"):
                self.lines.append(l)
            else:
                self.lines.append("    " + l)
    def label(self, name):
        self.lines.append(name + ":")
    def new_label(self, base):
        self.uid += 1
        return f"L_{base}_{self.uid}"
    def comment(self, s):
        self.lines.append("    ; " + s)
    def nop(self, states):
        while states > 0:
            n = min(states, 16)
            self.lines.append(f"    s_nop {n-1}")
            states -= n
    def text(self):
        return "\n".join(self.lines) + "\n"

def v(a, n=1):
    return f"v{a}" if n == 1 else f"v[{a}:{a+n-1}]"
def s(a, n=1):
    return f"s{a}" if n == 1 else f"s[{a}:{a+n-1}]"

def mfma32(d, a, b, c):
    cs = c if isinstance(c, str) else v(c, 16)
    return f"v_mfma_f32_32x32x16_bf16 {v(d,16)}, {v(a,4)}, {v(b,4)}, {cs}"

def kernel_header(A, name):
    A(f".globl {name}")
    A(".p2align 8")
    A(f".type {name},@function")
    A.label(name)

def kernel_desc(name, vgpr, sgpr=102, agpr=0):
    acc = (vgpr + 3) // 4 * 4
    nfv = acc + agpr if agpr else vgpr
    return f""".amdhsa_kernel {name}
  .amdhsa_next_free_vgpr {nfv}
  .amdhsa_next_free_sgpr {sgpr}
  .amdhsa_accum_offset {acc}
  .amdhsa_group_segment_fixed_size 0
  .amdhsa_kernarg_size 80
  .amdhsa_user_sgpr_count 2
  .amdhsa_user_sgpr_kernarg_segment_ptr 1
  .amdhsa_system_sgpr_workgroup_id_x 1
  .amdhsa_float_denorm_mode_32 3
  .amdhsa_float_denorm_mode_16_64 3
.end_amdhsa_kernel
"""

def srd(A, dst, ptr, nbytes):
    A(f"s_mov_b32 s{dst}, s{ptr}")
    A(f"s_and_b32 s{dst+1}, s{ptr+1}, 0xffff")
    A(f"s_mov_b32 s{dst+2}, {hex(nbytes)}")
    A(f"s_mov_b32 s{dst+3}, 0x20000")
```

```python
from asmlib import *
from layout import *
import struct

def f32bits(x):
    return struct.unpack("<I", struct.pack("<f", x))[0]

NAME = "k1_proj_kernel"
LDS = 163840

S_X, S_WQKV, S_WO, S_WD, S_WG, S_WU, S_WS = 4, 6, 8, 10, 12, 14, 16
SRD_X, SRD_LD, SRD_WS = 20, 24, 28
P_LO, P_HI, P_REC, P_OFF, P_STRIDE = 32, 33, 34, 35, 36
A_CUR, A_STEP, A_H1 = 38, 39, 37
S_W, S_MB, S_RB, S_CG = 40, 41, 42, 43
S_CD, S_LDSC = 44, 46
S_J, S_RSLOT, S_DSLOT, S_W8K = 48, 49, 50, 51
S_SC = 52
S_E, S_CLS, S_IDX, S_T0, T1, T2 = 54, 55, 56, 57, 58, 59
R_LO, R_HI, R_REC, R_OFF, R_OUT = 60, 61, 62, 63, 64
S_MASK, S_ONES = 65, 66
S_SO = 67
V_L, VA0, VA1, VL0, VL1, VD, VROW, VCH, V_ST, V_STV = 1, 2, 3, 4, 5, 6, 7, 8, 10, 11
TMP = 16
WB = 32
ACCA, ACCB = 64, 96
X = 128

def prepare(A):
    A(f"s_lshr_b32 s{S_CLS}, s{S_E}, 5")
    A(f"s_and_b32 s{S_IDX}, s{S_E}, 31")
    A(f"s_lshl_b32 s{P_OFF}, s{S_IDX}, 7")
    A(f"s_cmp_eq_u32 s{S_CLS}, 1")
    A(f"s_cselect_b32 s{P_LO}, s{S_WG}, s{S_WQKV}")
    A(f"s_cselect_b32 s{P_HI}, s{S_WG+1}, s{S_WQKV+1}")
    A(f"s_cmp_eq_u32 s{S_CLS}, 2")
    A(f"s_cselect_b32 s{P_LO}, s{S_WU}, s{P_LO}")
    A(f"s_cselect_b32 s{P_HI}, s{S_WU+1}, s{P_HI}")
    A(f"s_cmp_eq_u32 s{S_CLS}, 0")
    A(f"s_cselect_b32 s{P_REC}, 0x180000, 0x1c0000" if False else f"s_mov_b32 s{P_REC}, 0x1c0000")
    A(f"s_cselect_b32 s{P_REC}, 0x180000, s{P_REC}")
    A(f"s_mov_b32 s{P_STRIDE}, 3584")
    A(f"s_cselect_b32 s{P_STRIDE}, 3072, s{P_STRIDE}")
    A(f"s_cmp_eq_u32 s{S_CLS}, 3")
    A(f"s_cselect_b32 s{P_LO}, s{R_LO}, s{P_LO}")
    A(f"s_cselect_b32 s{P_HI}, s{R_HI}, s{P_HI}")
    A(f"s_cselect_b32 s{P_REC}, s{R_REC}, s{P_REC}")
    A(f"s_cselect_b32 s{P_OFF}, s{R_OFF}, s{P_OFF}")
    A(f"s_cselect_b32 s{P_STRIDE}, 1024, s{P_STRIDE}")
    A(f"s_cmp_eq_u32 s{S_CLS}, 4")
    A(f"s_cselect_b32 s{P_REC}, 0, s{P_REC}")

def activate(A):
    A(f"s_mov_b32 s{SRD_LD}, s{P_LO}")
    A(f"s_and_b32 s{SRD_LD+1}, s{P_HI}, 0xffff")
    A(f"s_mov_b32 s{SRD_LD+2}, s{P_REC}")
    A(f"s_mov_b32 s{A_CUR}, s{P_OFF}")
    A(f"s_lshl_b32 s{A_STEP}, s{P_STRIDE}, 3")
    A(f"s_mul_i32 s{A_H1}, s{P_STRIDE}, 192")
    A(f"v_mad_u32_u24 v{VD}, v{VROW}, s{P_STRIDE}, v{VCH}")

def dma_one(A, first):
    if first:
        A(f"s_add_u32 m0, s{S_DSLOT}, s{S_W8K}")
        A("s_nop 0")
    else:
        A(f"s_addk_i32 m0, 0x400")
        A(f"s_add_u32 s{A_CUR}, s{A_CUR}, s{A_STEP}")
    A(f"buffer_load_dwordx4 v{VD}, s[{SRD_LD}:{SRD_LD+3}], s{A_CUR} offen lds")

def dma_finish(A):
    A(f"s_add_u32 s{A_CUR}, s{A_CUR}, s{A_STEP}")

def adv_slot(A, sreg):
    A(f"s_add_u32 s{sreg}, s{sreg}, 0x8000")
    A(f"s_cmp_eq_u32 s{sreg}, 0x28000")
    A(f"s_cselect_b32 s{sreg}, 0x8000, s{sreg}")

def rd(A, gs, tile):
    b = WB + 8 * (gs & 3) + 4 * tile
    off = (gs & 15) * 2048
    va = VA0 if tile == 0 else VA1
    A(f"ds_read_b64_tr_b16 {v(b,2)}, v{va} offset:{off}")
    A(f"ds_read_b64_tr_b16 {v(b+2,2)}, v{va} offset:{off+512}")

def chain_half(A, acc, transposed, half):
    for sidx in range(16):
        gs = 16 * half + sidx
        if sidx == 14:
            adv_slot(A, S_RSLOT)
            A(f"v_add_u32 v{VA0}, s{S_RSLOT}, v{VL0}")
            A(f"v_add_u32 v{VA1}, s{S_RSLOT}, v{VL1}")
        for tile in range(2):
            rd(A, gs + 2, tile)
            A("s_waitcnt lgkmcnt(8)")
            w = WB + 8 * (gs & 3) + 4 * tile
            x = X + 4 * gs
            d = acc + 16 * tile
            c = "0" if gs == 0 else d
            A(mfma32(d, w, x, c) if transposed else mfma32(d, x, w, c))
        if sidx == 5:
            A("s_waitcnt vmcnt(8)")
            A("s_barrier")
            if half == 0:
                A(f"s_add_u32 s{A_CUR}, s{A_CUR}, s{A_H1}")
            else:
                activate(A)
        if 6 <= sidx <= 13:
            dma_one(A, sidx == 6)
        if sidx == 13:
            dma_finish(A)
            adv_slot(A, S_DSLOT)

def gen(A):
    kernel_header(A, NAME)
    A(f"s_cmp_ge_u32 s2, 256")
    A(f"s_cbranch_scc1 L_k1_end")
    A(f"s_load_dwordx4 s[4:7], s[0:1], 0")
    A(f"s_load_dwordx2 s[8:9], s[0:1], 16")
    A(f"s_load_dwordx2 s[10:11], s[0:1], 48")
    A(f"s_load_dwordx4 s[12:15], s[0:1], 32")
    A(f"s_load_dwordx2 s[16:17], s[0:1], 72")
    A(f"v_readfirstlane_b32 s{S_W}, v0")
    A(f"v_and_b32 v{V_L}, 63, v0")
    A("s_nop 1")
    A(f"s_lshr_b32 s{S_W}, s{S_W}, 6")
    A(f"s_and_b32 s{S_T0}, s2, 1")
    A(f"s_lshl_b32 s{S_T0}, s{S_T0}, 3")
    A(f"s_bfe_u32 s{T1}, s2, 0x30003")
    A(f"s_add_u32 s{S_RB}, s{S_T0}, s{T1}")
    A(f"s_bfe_u32 s{S_T0}, s2, 0x20001")
    A(f"s_lshl_b32 s{S_T0}, s{S_T0}, 2")
    A(f"s_lshr_b32 s{T1}, s2, 6")
    A(f"s_add_u32 s{S_CG}, s{S_T0}, s{T1}")
    A(f"s_lshl_b32 s{S_MB}, s{S_RB}, 2")
    A(f"s_add_u32 s{S_MB}, s{S_MB}, s{S_W}")
    A(f"s_lshl_b32 s{S_W8K}, s{S_W}, 13")
    A(f"v_lshrrev_b32 v12, 2, v{V_L}")
    A(f"v_lshrrev_b32 v13, 4, v{V_L}")
    A(f"v_xor_b32 v13, v13, v{V_L}")
    A(f"v_and_b32 v13, 3, v13")
    A(f"v_lshlrev_b32 v13, 4, v13")
    A(f"v_lshl_add_u32 v12, v12, 10, v13")
    A(f"v_lshrrev_b32 v{VROW}, 3, v{V_L}")
    A(f"v_lshrrev_b32 v13, 2, v{V_L}")
    A(f"v_and_b32 v13, 4, v13")
    A(f"v_and_b32 v14, 7, v{V_L}")
    A(f"v_xor_b32 v13, v13, v14")
    A(f"v_lshlrev_b32 v{VCH}, 4, v13")
    A(f"s_lshl_b32 s{S_T0}, s{S_W}, 6")
    A(f"v_add_u32 v{VROW}, s{S_T0}, v{VROW}")
    A("s_waitcnt lgkmcnt(0)")
    srd(A, SRD_X, S_X, 0x200000)
    srd(A, SRD_WS, S_WS, WS_USED)
    A(f"s_mov_b32 s{SRD_LD+3}, 0x20000")
    A(f"s_lshl_b32 s{S_SO}, s{S_MB}, 15")
    A(f"s_add_u32 s{S_T0}, s{S_W}, 1")
    A(f"s_lshl_b32 s{S_T0}, s{S_T0}, 15")
    A(f"s_mov_b32 m0, s{S_T0}")
    for rg in range(2):
        for kq in range(16):
            if not (rg == 0 and kq == 0):
                if kq == 0:
                    A(f"s_addk_i32 m0, {16384 - 15*960}")
                    A(f"s_add_u32 s{S_SO}, s{S_SO}, 16384")
                else:
                    A(f"s_addk_i32 m0, 960")
                    A("s_nop 0")
            else:
                A("s_nop 0")
            A(f"buffer_load_dwordx4 v12, s[{SRD_X}:{SRD_X+3}], s{S_SO} offen offset:{64*kq} lds")
    A(f"s_and_b32 s{S_T0}, s2, 7")
    A(f"s_lshl_b32 s{S_T0}, s{S_T0}, 7")
    A(f"s_lshr_b32 s{T1}, s2, 3")
    A(f"s_cmp_lt_u32 s2, 56")
    A(f"s_cselect_b32 s{R_LO}, s{S_WD}, s{S_WO}")
    A(f"s_cselect_b32 s{R_HI}, s{S_WD+1}, s{S_WO+1}")
    A(f"s_cselect_b32 s{R_REC}, 0x1c0000, 0x80000" if False else f"s_mov_b32 s{R_REC}, 0x80000")
    A(f"s_cselect_b32 s{R_REC}, 0x1c0000, s{R_REC}")
    A(f"s_cselect_b32 s{T2}, 0, 7")
    A(f"s_sub_u32 s{T1}, s{T1}, s{T2}")
    A(f"s_lshl_b32 s{R_OFF}, s{T1}, 18")
    A(f"s_add_u32 s{R_OFF}, s{R_OFF}, s{S_T0}")
    A(f"s_cmp_lt_u32 s2, 72")
    A(f"s_cselect_b32 s{R_REC}, s{R_REC}, 0")
    A(f"s_and_b32 s{S_T0}, s2, 7")
    A(f"s_lshl_b32 s{S_T0}, s{S_T0}, 1")
    A(f"s_cmp_lt_u32 s2, 56")
    A(f"s_cselect_b32 s{T2}, 112, 32")
    A(f"s_mul_i32 s{S_T0}, s{S_T0}, s{T2}")
    A(f"s_lshl_b32 s{T1}, s{T1}, 4")
    A(f"s_add_u32 s{S_T0}, s{S_T0}, s{T1}")
    A(f"s_lshl_b32 s{T1}, s{S_W}, 2")
    A(f"s_add_u32 s{S_T0}, s{S_T0}, s{T1}")
    A(f"s_lshl_b32 s{S_T0}, s{S_T0}, 10")
    A(f"s_cmp_lt_u32 s2, 56")
    A(f"s_mov_b32 s{T1}, {hex(WOF)}")
    A(f"s_cselect_b32 s{T1}, {hex(WDF)}, s{T1}")
    A(f"s_add_u32 s{R_OUT}, s{S_T0}, s{T1}")
    lab_b, lab_d = A.new_label("kindB"), A.new_label("descdone")
    A(f"s_cmp_ge_u32 s{S_CG}, 12")
    A(f"s_cbranch_scc1 {lab_b}")
    A(f"s_lshl_b32 s{S_T0}, s{S_CG}, 1")
    A(f"s_mul_i32 s{T1}, s{S_T0}, 0x01010100")
    A(f"s_add_u32 s{S_CD}, s{T1}, s{S_CG}")
    A(f"s_add_u32 s{S_CD}, s{S_CD}, {hex((0x20<<8)|(0x40<<16)|(0x21<<24))}")
    A(f"s_add_u32 s{S_CD+1}, s{S_T0}, {hex(0x41|(0x60<<8)|(0x80<<16))}")
    A(f"s_branch {lab_d}")
    A.label(lab_b)
    A(f"s_mul_i32 s{S_T0}, s{S_CG}, 3")
    A(f"s_sub_u32 s{S_T0}, s{S_T0}, 24")
    A(f"s_mul_i32 s{T1}, s{S_T0}, 0x010101")
    A(f"s_add_u32 s{T1}, s{T1}, 0x020100")
    A(f"s_add_u32 s{T2}, s{S_CG}, 12")
    A(f"s_lshl_b32 s{S_T0}, s{T2}, 24")
    A(f"s_add_u32 s{S_CD}, s{T1}, s{S_T0}")
    A(f"s_add_u32 s{S_CD}, s{S_CD}, 0x20000000")
    A(f"s_add_u32 s{S_CD+1}, s{T2}, {hex(0x40|(0x60<<8)|(0x80<<16))}")
    A.label(lab_d)
    A(f"s_mov_b32 s{S_LDSC}, s{S_CD}")
    A(f"s_mov_b32 s{S_LDSC+1}, s{S_CD+1}")
    A(f"s_and_b32 s{S_E}, s{S_LDSC}, 0xff")
    A(f"s_lshr_b64 s[{S_LDSC}:{S_LDSC+1}], s[{S_LDSC}:{S_LDSC+1}], 8")
    prepare(A)
    activate(A)
    A(f"s_mov_b32 s{S_DSLOT}, 0")
    for i in range(8):
        dma_one(A, i == 0)
    dma_finish(A)
    A(f"s_and_b32 s{S_E}, s{S_LDSC}, 0xff")
    A(f"s_lshr_b64 s[{S_LDSC}:{S_LDSC+1}], s[{S_LDSC}:{S_LDSC+1}], 8")
    prepare(A)
    A(f"v_lshrrev_b32 v13, 5, v{V_L}")
    A(f"v_lshlrev_b32 v{VL0}, 10, v13")
    A(f"v_bfe_u32 v13, v{V_L}, 2, 2")
    A(f"v_lshl_add_u32 v{VL0}, v13, 7, v{VL0}")
    A(f"v_lshrrev_b32 v13, 1, v13")
    A(f"v_lshl_add_u32 v{VL0}, v13, 6, v{VL0}")
    A(f"v_bfe_u32 v13, v{V_L}, 4, 1")
    A(f"v_lshl_add_u32 v{VL0}, v13, 5, v{VL0}")
    A(f"v_and_b32 v13, 3, v{V_L}")
    A(f"v_lshl_add_u32 v{VL0}, v13, 3, v{VL0}")
    A(f"v_xor_b32 v{VL1}, 64, v{VL0}")
    A(f"v_lshlrev_b32 v{V_ST}, 4, v{V_L}")
    A(f"v_bfe_u32 v13, v{V_L}, 4, 1")
    A(f"v_lshlrev_b32 v{V_STV}, 16, v13")
    A(f"v_lshrrev_b32 v13, 5, v{V_L}")
    A(f"v_lshl_add_u32 v{V_STV}, v13, 8, v{V_STV}")
    A(f"v_and_b32 v13, 15, v{V_L}")
    A(f"v_lshl_add_u32 v{V_STV}, v13, 4, v{V_STV}")
    A(f"v_bfe_u32 v13, v{V_L}, 4, 1")
    A(f"v_lshlrev_b32 v14, 14, v13")
    A(f"v_and_b32 v13, 15, v{V_L}")
    A(f"v_lshl_add_u32 v14, v13, 6, v14")
    A(f"v_lshrrev_b32 v13, 5, v{V_L}")
    A(f"v_bfe_u32 v15, v{V_L}, 2, 2")
    A(f"v_xor_b32 v13, v13, v15")
    A(f"v_lshl_add_u32 v14, v13, 4, v14")
    A(f"s_add_u32 s{S_T0}, s{S_W}, 1")
    A(f"s_lshl_b32 s{S_T0}, s{S_T0}, 15")
    A(f"v_add_u32 v14, s{S_T0}, v14")
    A(f"v_xor_b32 v15, 32, v14")
    A(f"s_mov_b32 s{S_MASK}, 0xffff0000")
    A(f"s_mov_b32 s{S_ONES}, 0x3f803f80")
    A("s_waitcnt vmcnt(8)")
    for st in range(32):
        a = 14 if (st & 1) == 0 else 15
        A(f"ds_read_b128 {v(X+4*st,4)}, v{a} offset:{(st>>1)*1024}")
    A("s_waitcnt lgkmcnt(0)")
    A("s_barrier")
    A(f"s_mov_b32 s{S_DSLOT}, 0x8000")
    A(f"s_add_u32 s{A_CUR}, s{A_CUR}, s{A_H1}")
    for i in range(8):
        dma_one(A, i == 0)
    activate(A)
    A(f"s_mov_b32 s{S_DSLOT}, 0x10000")
    for i in range(8):
        dma_one(A, i == 0)
    dma_finish(A)
    A(f"s_mov_b32 s{S_DSLOT}, 0x18000")
    for r in range(16, 20):
        A(f"v_mov_b32 v{r}, 0")
    for i in range(128):
        A(f"v_dot2c_f32_bf16 v{16+(i&1)}, s{S_ONES}, v{X+i}")
        A(f"v_dot2c_f32_bf16 v{18+(i&1)}, v{X+i}, v{X+i}")
    A("s_nop 2")
    A("v_add_f32 v16, v16, v17")
    A("v_add_f32 v18, v18, v19")
    A("s_nop 0")
    A("v_mov_b32 v17, v16")
    A("v_mov_b32 v19, v18")
    A("s_nop 1")
    A("v_permlane32_swap_b32 v16, v17")
    A("v_permlane32_swap_b32 v18, v19")
    A("s_nop 1")
    A("v_add_f32 v16, v16, v17")
    A("v_add_f32 v18, v18, v19")
    A(f"s_mov_b32 s{S_T0}, {hex(f32bits(1.0/512))}")
    A(f"v_mul_f32 v16, s{S_T0}, v16")
    A(f"v_mul_f32 v18, s{S_T0}, v18")
    A(f"v_fma_f32 v18, -v16, v16, v18")
    A(f"v_max_f32 v18, 0, v18")
    A(f"v_add_f32 v18, {hex(f32bits(1e-5))}, v18")
    A(f"v_rsq_f32 v20, v18")
    A("s_nop 0")
    A(f"v_mul_f32 v22, v16, v20")
    A(f"v_sub_f32 v22, 0, v22")
    for i in range(128):
        t = 24 + 2 * (i & 3)
        A(f"v_lshlrev_b32 v{t}, 16, v{X+i}")
        A(f"v_and_b32 v{t+1}, s{S_MASK}, v{X+i}")
        if i > 0:
            tp = 24 + 2 * ((i - 1) & 3)
            A(f"v_cvt_pk_bf16_f32 v{X+i-1}, v{tp}, v{tp+1}")
        A(f"v_pk_fma_f32 {v(t,2)}, {v(t,2)}, v[20:21], v[22:23] op_sel_hi:[1,0,0]")
    tp = 24 + 2 * (127 & 3)
    A(f"v_cvt_pk_bf16_f32 v{X+127}, v{tp}, v{tp+1}")
    A("s_waitcnt vmcnt(16)")
    A("s_barrier")
    A(f"s_mov_b32 s{S_RSLOT}, 0")
    A(f"v_mov_b32 v{VA0}, v{VL0}")
    A(f"v_mov_b32 v{VA1}, v{VL1}")
    for gs in range(2):
        for tile in range(2):
            rd(A, gs, tile)
    A(f"s_mov_b32 s{S_J}, 0")
    A.label("L_k1_job")
    A(f"s_and_b32 s{S_E}, s{S_LDSC}, 0xff")
    A(f"s_lshr_b64 s[{S_LDSC}:{S_LDSC+1}], s[{S_LDSC}:{S_LDSC+1}], 8")
    prepare(A)
    A(f"s_and_b32 s{S_E}, s{S_CD}, 0xff")
    A(f"s_lshr_b64 s[{S_CD}:{S_CD+1}], s[{S_CD}:{S_CD+1}], 8")
    A(f"s_lshr_b32 s{S_CLS}, s{S_E}, 5")
    A(f"s_and_b32 s{S_IDX}, s{S_E}, 31")
    A(f"s_cmp_eq_u32 s{S_CLS}, 2")
    A(f"s_cbranch_scc1 L_k1_chainU")
    A(f"s_cmp_ge_u32 s{S_E}, 16")
    A(f"s_cselect_b32 s{S_T0}, 1, 0")
    A(f"s_cmp_ge_u32 s{S_E}, 32")
    A(f"s_cselect_b32 s{S_T0}, 0, s{S_T0}")
    A(f"s_cmp_eq_u32 s{S_T0}, 1")
    A(f"s_cbranch_scc1 L_k1_chainV")
    chain_half(A, ACCA, True, 0)
    chain_half(A, ACCA, True, 1)
    A(f"s_cmp_eq_u32 s{S_CLS}, 1")
    A(f"s_cbranch_scc1 L_k1_next")
    A(f"s_cmp_lt_u32 s{S_IDX}, 8")
    A(f"s_mov_b32 s{S_SC}, 1.0")
    A(f"s_cselect_b32 s{S_SC}, {hex(f32bits(CQ))}, s{S_SC}")
    A(f"s_mov_b32 s{S_SC+1}, s{S_SC}")
    A(f"s_lshr_b32 s{S_T0}, s{S_IDX}, 3")
    A(f"s_lshl_b32 s{S_T0}, s{S_T0}, 21")
    A(f"s_and_b32 s{T1}, s{S_IDX}, 7")
    A(f"s_lshl_b32 s{T1}, s{T1}, 8")
    A(f"s_add_u32 s{T1}, s{T1}, s{S_MB}")
    A(f"s_lshl_b32 s{T1}, s{T1}, 10")
    A(f"s_add_u32 s{S_SO}, s{S_T0}, s{T1}")
    if QF: A(f"s_add_u32 s{S_SO}, s{S_SO}, {hex(QF)}")
    A.nop(6)
    for q in range(4):
        b = ACCA + 8 * q
        for u in range(4):
            A(f"v_pk_mul_f32 {v(b+2*u,2)}, {v(b+2*u,2)}, s[{S_SC}:{S_SC+1}]")
        for u in range(4):
            A(f"v_cvt_pk_bf16_f32 v{TMP+4*q+u}, v{b+2*u}, v{b+2*u+1}")
        A(f"buffer_store_dwordx4 {v(TMP+4*q,4)}, v{V_ST}, s[{SRD_WS}:{SRD_WS+3}], s{S_SO} offen")
        if q < 3:
            A(f"s_add_u32 s{S_SO}, s{S_SO}, 0x10000")
    A("s_branch L_k1_next")
    A.label("L_k1_chainV")
    chain_half(A, ACCA, False, 0)
    chain_half(A, ACCA, False, 1)
    A(f"s_and_b32 s{T1}, s{S_IDX}, 7")
    A(f"s_lshl_b32 s{T1}, s{T1}, 8")
    A(f"s_add_u32 s{T1}, s{T1}, s{S_MB}")
    A(f"s_lshl_b32 s{T1}, s{T1}, 10")
    A(f"s_add_u32 s{S_SO}, s{T1}, {hex(VF)}")
    A.nop(9)
    for T in range(2):
        for ab in range(2):
            q = 2 * T + ab
            b = ACCA + 8 * q
            for u in range(4):
                A(f"v_cvt_pk_bf16_f32 v{TMP+4*q+u}, v{b+2*u}, v{b+2*u+1}")
            A(f"buffer_store_dwordx4 {v(TMP+4*q,4)}, v{V_STV}, s[{SRD_WS}:{SRD_WS+3}], s{S_SO} offen offset:{512*ab}")
        if T == 0:
            A(f"s_add_u32 s{S_SO}, s{S_SO}, 0x20000")
    A("s_branch L_k1_next")
    A.label("L_k1_chainU")
    chain_half(A, ACCB, True, 0)
    chain_half(A, ACCB, True, 1)
    A(f"s_mul_i32 s{T1}, s{S_MB}, 112")
    A(f"s_lshl_b32 s{S_T0}, s{S_IDX}, 2")
    A(f"s_add_u32 s{T1}, s{T1}, s{S_T0}")
    A(f"s_lshl_b32 s{T1}, s{T1}, 10")
    A(f"s_add_u32 s{S_SO}, s{T1}, {hex(HF)}")
    A.nop(9)
    for q in range(4):
        a, b = ACCA + 8 * q, ACCB + 8 * q
        if q == 2:
            A.nop(1)
        for u in range(4):
            A(f"v_pk_mul_f32 {v(a+2*u,2)}, {v(a+2*u,2)}, {v(b+2*u,2)}")
        for u in range(4):
            A(f"v_cvt_pk_bf16_f32 v{TMP+4*q+u}, v{a+2*u}, v{a+2*u+1}")
        A(f"buffer_store_dwordx4 {v(TMP+4*q,4)}, v{V_ST}, s[{SRD_WS}:{SRD_WS+3}], s{S_SO} offen offset:{1024*q}")
    A.label("L_k1_next")
    A(f"s_add_u32 s{S_J}, s{S_J}, 1")
    A(f"s_cmp_lt_u32 s{S_J}, 5")
    A(f"s_cbranch_scc1 L_k1_job")
    A(f"s_cmp_ge_u32 s2, 72")
    A(f"s_cbranch_scc1 L_k1_end")
    A("s_waitcnt vmcnt(0) lgkmcnt(0)")
    A(f"v_lshrrev_b32 v13, 5, v{V_L}")
    A(f"v_lshlrev_b32 v13, 9, v13")
    A(f"v_sub_u32 v12, v{VL0}, v13")
    A(f"s_add_u32 s{S_T0}, s{S_W8K}, 0x10000")
    A(f"v_add_u32 v12, s{S_T0}, v12")
    A(f"v_xor_b32 v13, 64, v12")
    for un in range(4):
        for T in range(2):
            b = WB + 8 * un + 4 * T
            va = 12 + T
            A(f"ds_read_b64_tr_b16 {v(b,2)}, v{va} offset:{un*2048}")
            A(f"ds_read_b64_tr_b16 {v(b+2,2)}, v{va} offset:{un*2048+1024}")
    A(f"s_cmp_lt_u32 s2, 56")
    A(f"s_mov_b32 s{T1}, {32*1024}")
    A(f"s_cselect_b32 s{T1}, {112*1024}, s{T1}")
    A(f"s_add_u32 s{T1}, s{T1}, s{R_OUT}")
    A("s_waitcnt lgkmcnt(0)")
    for un in range(4):
        for T in range(2):
            b = WB + 8 * un + 4 * T
            so = R_OUT if T == 0 else T1
            A(f"buffer_store_dwordx4 {v(b,4)}, v{V_ST}, s[{SRD_WS}:{SRD_WS+3}], s{so} offen offset:{1024*un}")
    A.label("L_k1_end")
    A("s_endpgm")
    return NAME, 256, LDS, kernel_desc(NAME, 256)
```

```python
from asmlib import *
from layout import *
import struct
def f32bits(x):
    return struct.unpack("<I", struct.pack("<f", x))[0]

NAME = "k2_attn_kernel"
LDS = 131072 + 1024
NW = 8
S_WS = 4
SRD_WS = 8
S_W, S_H, S_QB, S_SO = 12, 13, 14, 15
S_T0, T1, T2 = 16, 17, 18
S_VM = 20
S_IT = 22
S_B = 23
V_L, V_KA, V_VA, V_L16 = 1, 2, 3, 4
S0 = 8
P0 = 40
O = 56
C = 72
KB = 88
VB = 96
Q = 112
T = 116
RED = 131072
T_SAFE = 96.0

def kread(A, t, buf):
    A(f"ds_read_b128 {v(KB+4*buf,4)}, v{V_KA} offset:{t*1024}")
def vread(A, t, buf):
    A(f"s_mov_b64 exec, s[{S_VM}:{S_VM+1}]")
    A(f"ds_read_b128 {v(VB+8*buf,4)}, v{V_VA} offset:{t*1024}")
    A(f"ds_read_b128 {v(VB+8*buf+4,4)}, v{V_VA} offset:{t*1024+512}")
    A(f"s_mov_b64 exec, -1")

def cross_max32(A, r, t):
    for sh in ("row_ror:1", "row_ror:2", "row_ror:4", "row_ror:8"):
        A("s_nop 1")
        A(f"v_max_f32_dpp v{r}, v{r}, v{r} {sh} row_mask:0xf bank_mask:0xf")
    A("s_nop 1")
    A(f"v_mov_b32 v{t}, v{r}")
    A("s_nop 1")
    A(f"v_permlane16_swap_b32 v{r}, v{t}")
    A("s_nop 1")
    A(f"v_max_f32 v{r}, v{r}, v{t}")
    A("s_nop 0")
    A(f"v_mov_b32 v{t}, v{r}")
    A("s_nop 1")
    A(f"v_permlane32_swap_b32 v{r}, v{t}")
    A("s_nop 1")
    A(f"v_max_f32 v{r}, v{r}, v{t}")

def gen(A):
    kernel_header(A, NAME)
    A("s_cmp_ge_u32 s2, 256")
    A("s_cbranch_scc1 L_k2_end")
    A(f"s_load_dwordx2 s[{S_WS}:{S_WS+1}], s[0:1], 72")
    A(f"v_readfirstlane_b32 s{S_W}, v0")
    A(f"v_and_b32 v{V_L}, 63, v0")
    A("s_nop 1")
    A(f"s_lshr_b32 s{S_W}, s{S_W}, 6")
    A(f"s_and_b32 s{S_H}, s2, 31")
    A(f"s_lshr_b32 s{S_QB}, s2, 5")
    A(f"v_lshlrev_b32 v{V_L16}, 4, v{V_L}")
    A("s_waitcnt lgkmcnt(0)")
    srd(A, SRD_WS, S_WS, WS_USED)
    A(f"s_lshl_b32 s{S_T0}, s{S_H}, 16")
    A(f"s_lshl_b32 s{T1}, s{S_W}, 13")
    A(f"s_add_u32 s{S_SO}, s{S_T0}, s{T1}")
    A(f"s_add_u32 s{T2}, s{S_SO}, {hex(VF)}")
    A(f"s_add_u32 s{S_SO}, s{S_SO}, {hex(KF)}")
    A(f"s_mov_b32 m0, s{T1}")
    A("s_nop 0")
    for i in range(8):
        if i == 4:
            A(f"s_add_u32 s{S_SO}, s{S_SO}, 4096")
            A(f"s_addk_i32 m0, 4096")
            A("s_nop 0")
        A(f"buffer_load_dwordx4 v{V_L16}, s[{SRD_WS}:{SRD_WS+3}], s{S_SO} offen offset:{1024*(i&3)} lds")
    A(f"s_lshl_b32 s{S_SO}, s{S_QB}, 3")
    A(f"s_add_u32 s{S_SO}, s{S_SO}, s{S_W}")
    A(f"s_lshl_b32 s{S_SO}, s{S_SO}, 10")
    A(f"s_add_u32 s{S_SO}, s{S_SO}, s{S_T0}")
    if QF: A(f"s_add_u32 s{S_SO}, s{S_SO}, {hex(QF)}")
    A(f"buffer_load_dwordx4 {v(Q,4)}, v{V_L16}, s[{SRD_WS}:{SRD_WS+3}], s{S_SO} offen")
    A(f"s_add_u32 m0, s{T1}, 0x10000")
    A("s_nop 0")
    for i in range(8):
        if i == 4:
            A(f"s_add_u32 s{T2}, s{T2}, 4096")
            A(f"s_addk_i32 m0, 4096")
            A("s_nop 0")
        A(f"buffer_load_dwordx4 v{V_L16}, s[{SRD_WS}:{SRD_WS+3}], s{T2} offen offset:{1024*(i&3)} lds")
    A(f"v_mov_b32 v{V_KA}, v{V_L16}")
    A(f"v_lshrrev_b32 v{T}, 5, v{V_L}")
    A(f"v_lshlrev_b32 v{V_VA}, 8, v{T}")
    A(f"v_and_b32 v{T}, 15, v{V_L}")
    A(f"v_lshl_add_u32 v{V_VA}, v{T}, 4, v{V_VA}")
    A(f"v_add_u32 v{V_VA}, 0x10000, v{V_VA}")
    A(f"s_mov_b32 s{S_VM}, 0xffff")
    A(f"s_mov_b32 s{S_VM+1}, 0xffff")
    for i in range(16):
        A(f"v_mov_b32 v{VB+i}, 0x3f803f80")
        A(f"v_mov_b32 v{O+i}, 0")
    A("s_waitcnt vmcnt(8)")
    A("s_barrier")
    A(f"s_lshl_b32 s{T1}, s{S_W}, 13")
    A(f"v_add_u32 v{T}, s{T1}, v{V_L16}")
    for i in range(8):
        A(f"ds_read_b128 {v(S0+4*i,4)}, v{T} offset:{1024*i}")
    A(f"v_mov_b32 v{T+1}, 0")
    for u in range(4):
        A(f"v_dot2c_f32_bf16 v{T+1}, v{Q+u}, v{Q+u}")
    for i in range(8):
        A(f"v_mov_b32 v{P0+i}, 0")
    A("s_waitcnt lgkmcnt(0)")
    for u in range(4):
        for i in range(8):
            A(f"v_dot2c_f32_bf16 v{P0+i}, v{S0+4*i+u}, v{S0+4*i+u}")
    A("s_nop 2")
    for i in range(8):
        A(f"v_mov_b32 v{P0+8+i}, v{P0+i}")
    A(f"v_mov_b32 v{T+2}, v{T+1}")
    A("s_nop 1")
    for i in range(8):
        A(f"v_permlane32_swap_b32 v{P0+i}, v{P0+8+i}")
    A(f"v_permlane32_swap_b32 v{T+1}, v{T+2}")
    A("s_nop 1")
    for i in range(8):
        A(f"v_add_f32 v{P0+i}, v{P0+i}, v{P0+8+i}")
    A(f"v_add_f32 v{T+1}, v{T+1}, v{T+2}")
    A(f"v_max3_f32 v{P0}, v{P0}, v{P0+1}, v{P0+2}")
    A(f"v_max3_f32 v{P0+3}, v{P0+3}, v{P0+4}, v{P0+5}")
    A(f"v_max3_f32 v{P0}, v{P0}, v{P0+6}, v{P0+7}")
    A(f"v_max_f32 v{P0}, v{P0}, v{P0+3}")
    cross_max32(A, P0, T + 3)
    cross_max32(A, T + 1, T + 3)
    A(f"s_lshl_b32 s{T1}, s{S_W}, 2")
    A(f"s_add_u32 s{T1}, s{T1}, {RED}")
    A(f"v_mov_b32 v{T+3}, s{T1}")
    A(f"ds_write_b32 v{T+3}, v{P0}")
    A("s_waitcnt vmcnt(0) lgkmcnt(0)")
    A("s_barrier")
    A(f"v_mov_b32 v{T+3}, {RED}")
    A(f"ds_read_b128 {v(P0,4)}, v{T+3}")
    A(f"ds_read_b128 {v(P0+4,4)}, v{T+3} offset:16")
    kread(A, 0, 0)
    kread(A, 1, 1)
    A("s_waitcnt lgkmcnt(2)")
    A(f"v_max3_f32 v{P0}, v{P0}, v{P0+1}, v{P0+2}")
    A(f"v_max3_f32 v{P0+3}, v{P0+3}, v{P0+4}, v{P0+5}")
    A(f"v_max3_f32 v{P0}, v{P0}, v{P0+6}, v{P0+7}")
    A(f"v_max_f32 v{P0}, v{P0}, v{P0+3}")
    A(f"v_mul_f32 v{P0}, v{P0}, v{T+1}")
    A(f"v_sqrt_f32 v{P0}, v{P0}")
    A("s_nop 0")
    A(f"v_mul_f32 v{P0}, {hex(f32bits(1.02))}, v{P0}")
    A("s_nop 0")
    A(f"v_readfirstlane_b32 s{S_B}, v{P0}")
    A(f"v_sub_f32 v{P0}, 0, v{P0}")
    for i in range(16):
        A(f"v_mov_b32 v{C+i}, v{P0}")
    A(f"s_cmp_le_u32 s{S_B}, {hex(f32bits(T_SAFE/2))}")
    A("s_cbranch_scc1 L_k2_main")
    A("s_waitcnt lgkmcnt(0)")
    A(f"v_mov_b32 v{T+2}, 0xff800000")
    A(f"v_mov_b32 v{T+4}, v{V_L16}")
    A(f"s_mov_b32 s{S_IT}, 64")
    A.label("L_k2_pre")
    A(f"ds_read_b128 {v(P0,4)}, v{T+4}")
    A(f"v_add_u32 v{T+4}, 1024, v{T+4}")
    A("s_waitcnt lgkmcnt(0)")
    A(mfma32(S0, P0, Q, "0"))
    A.nop(14)
    for i in range(8):
        A(f"v_max3_f32 v{T+2}, v{T+2}, v{S0+2*i}, v{S0+2*i+1}")
    A(f"s_sub_u32 s{S_IT}, s{S_IT}, 1")
    A(f"s_cmp_lg_u32 s{S_IT}, 0")
    A("s_cbranch_scc1 L_k2_pre")
    A(f"v_mov_b32 v{T+3}, v{T+2}")
    A("s_nop 1")
    A(f"v_permlane32_swap_b32 v{T+2}, v{T+3}")
    A("s_nop 1")
    A(f"v_max_f32 v{T+2}, v{T+2}, v{T+3}")
    A(f"v_sub_f32 v{T+2}, 0, v{T+2}")
    for i in range(16):
        A(f"v_mov_b32 v{C+i}, v{T+2}")
    A.label("L_k2_main")
    A("s_waitcnt lgkmcnt(0)")
    A("s_nop 1")
    A(mfma32(S0, KB, Q, C))
    for i in range(8):
        A(f"v_mov_b32 v{P0+8+i}, 0")
    A.nop(6)
    UN = 8
    A(f"s_mov_b32 s{S_IT}, {64//UN}")
    A(".p2align 6")
    A.label("L_k2_loop")
    for t in range(UN):
        cur, nxt = t & 1, 1 - (t & 1)
        Sc, Sn = S0 + 16 * cur, S0 + 16 * nxt
        Pc, Pn = P0 + 8 * cur, P0 + 8 * nxt
        ex = [f"v_exp_f32 v{Sc+i}, v{Sc+i}" for i in range(16)]
        cv = [f"v_cvt_pk_bf16_f32 v{Pc+i}, v{Sc+2*i}, v{Sc+2*i+1}" for i in range(8)]
        A("s_waitcnt lgkmcnt(1)")
        A(mfma32(O, VB + 8 * nxt, Pn, O))
        for e in ex[0:4]: A(e)
        A(mfma32(O, VB + 8 * nxt + 4, Pn + 4, O))
        vread(A, t, cur)
        for e in ex[4:8]: A(e)
        for e in cv[0:2]: A(e)
        A("s_waitcnt lgkmcnt(2)")
        A(mfma32(Sn, KB + 4 * nxt, Q, C))
        kread(A, t + 2, cur)
        for e in ex[8:12]: A(e)
        for e in cv[2:4]: A(e)
        for e in ex[12:16]: A(e)
        for e in cv[4:6]: A(e)
        A("s_nop 0")
        for e in cv[6:8]: A(e)
    A(f"v_add_u32 v{V_KA}, {UN*1024}, v{V_KA}")
    A(f"v_add_u32 v{V_VA}, {UN*1024}, v{V_VA}")
    A(f"s_sub_u32 s{S_IT}, s{S_IT}, 1")
    A(f"s_cmp_lg_u32 s{S_IT}, 0")
    A("s_cbranch_scc1 L_k2_loop")
    A("s_waitcnt lgkmcnt(0)")
    A(mfma32(O, VB + 8, P0 + 8, O))
    A(mfma32(O, VB + 12, P0 + 12, O))
    A(f"s_lshl_b32 s{S_SO}, s{S_QB}, 3")
    A(f"s_add_u32 s{S_SO}, s{S_SO}, s{S_W}")
    A(f"s_lshl_b32 s{S_SO}, s{S_SO}, 5")
    A(f"s_add_u32 s{S_SO}, s{S_SO}, s{S_H}")
    A(f"s_lshl_b32 s{S_SO}, s{S_SO}, 10")
    A(f"s_add_u32 s{S_SO}, s{S_SO}, {hex(OF)}")
    A.nop(10)
    A(f"v_rcp_f32 v{T}, v{O+8}")
    A("s_nop 0")
    for i in range(8):
        A(f"v_mul_f32 v{O+i}, v{O+i}, v{T}")
    for u in range(4):
        A(f"v_cvt_pk_bf16_f32 v{T+4+u}, v{O+2*u}, v{O+2*u+1}")
    A(f"buffer_store_dwordx4 {v(T+4,4)}, v{V_L16}, s[{SRD_WS}:{SRD_WS+3}], s{S_SO} offen")
    A.label("L_k2_end")
    A("s_endpgm")
    return NAME, 64 * NW, LDS, kernel_desc(NAME, 128)
```

```python
from asmlib import *
from layout import *

NAME = "k3_out_kernel"
NW = 8
PITCH = 272
WREG = 64 * PITCH
LDS = NW * WREG
S_X, S_OUT, S_WS = 4, 6, 8
SRD_WS, SRD_X, SRD_OUT = 12, 16, 20
S_W, S_MT, S_NT = 24, 25, 26
S_A0, S_A1, S_B0, S_B1 = 28, 29, 30, 31
S_T0, T1, T2, S_IT = 32, 33, 34, 35
V_L, V_L16 = 1, 2
ACC = 64
FB = 128
D = 6
KS_PER_WAVE = 18

def gen(A):
    kernel_header(A, NAME)
    A("s_cmp_ge_u32 s2, 256")
    A("s_cbranch_scc1 L_k3_end")
    A(f"s_load_dwordx2 s[{S_X}:{S_X+1}], s[0:1], 0")
    A(f"s_load_dwordx2 s[{S_OUT}:{S_OUT+1}], s[0:1], 56")
    A(f"s_load_dwordx2 s[{S_WS}:{S_WS+1}], s[0:1], 72")
    A(f"v_readfirstlane_b32 s{S_W}, v0")
    A(f"v_and_b32 v{V_L}, 63, v0")
    A("s_nop 1")
    A(f"s_lshr_b32 s{S_W}, s{S_W}, 6")
    A(f"s_and_b32 s{S_T0}, s2, 7")
    A(f"s_lshl_b32 s{S_T0}, s{S_T0}, 2")
    A(f"s_bfe_u32 s{T1}, s2, 0x20003")
    A(f"s_add_u32 s{S_MT}, s{S_T0}, s{T1}")
    A(f"s_lshr_b32 s{S_NT}, s2, 5")
    A(f"v_lshlrev_b32 v{V_L16}, 4, v{V_L}")
    A("s_waitcnt lgkmcnt(0)")
    srd(A, SRD_WS, S_WS, WS_USED)
    srd(A, SRD_X, S_X, 0x200000)
    srd(A, SRD_OUT, S_OUT, 0x200000)
    for i in range(64):
        A(f"v_mov_b32 v{ACC+i}, 0")
    def set_offsets(ksreg):
        lab_h, lab_e = A.new_label("ksh"), A.new_label("kse")
        A(f"s_cmp_ge_u32 s{ksreg}, 32")
        A(f"s_cbranch_scc1 {lab_h}")
        A(f"s_lshl_b32 s{S_T0}, s{S_MT}, 6")
        A(f"s_add_u32 s{S_T0}, s{S_T0}, s{ksreg}")
        A(f"s_lshl_b32 s{S_T0}, s{S_T0}, 10")
        A(f"s_add_u32 s{S_A0}, s{S_T0}, {hex(OF)}")
        A(f"s_add_u32 s{S_A1}, s{S_A0}, {32*1024}")
        A(f"s_lshl_b32 s{S_T0}, s{S_NT}, 6")
        A(f"s_add_u32 s{S_T0}, s{S_T0}, s{ksreg}")
        A(f"s_lshl_b32 s{S_T0}, s{S_T0}, 10")
        A(f"s_add_u32 s{S_B0}, s{S_T0}, {hex(WOF)}")
        A(f"s_add_u32 s{S_B1}, s{S_B0}, {32*1024}")
        A(f"s_branch {lab_e}")
        A.label(lab_h)
        A(f"s_sub_u32 s{T1}, s{ksreg}, 32")
        A(f"s_mul_i32 s{S_T0}, s{S_MT}, 224")
        A(f"s_add_u32 s{S_T0}, s{S_T0}, s{T1}")
        A(f"s_lshl_b32 s{S_T0}, s{S_T0}, 10")
        A(f"s_add_u32 s{S_A0}, s{S_T0}, {hex(HF)}")
        A(f"s_add_u32 s{S_A1}, s{S_A0}, {112*1024}")
        A(f"s_mul_i32 s{S_T0}, s{S_NT}, 224")
        A(f"s_add_u32 s{S_T0}, s{S_T0}, s{T1}")
        A(f"s_lshl_b32 s{S_T0}, s{S_T0}, 10")
        A(f"s_add_u32 s{S_B0}, s{S_T0}, {hex(WDF)}")
        A(f"s_add_u32 s{S_B1}, s{S_B0}, {112*1024}")
        A.label(lab_e)
    S_KS = 36
    A(f"s_mul_i32 s{S_KS}, s{S_W}, {KS_PER_WAVE}")
    def loads(buf):
        set_offsets(S_KS)
        b = FB + 16 * buf
        for i, so in enumerate((S_A0, S_A1, S_B0, S_B1)):
            A(f"buffer_load_dwordx4 {v(b+4*i,4)}, v{V_L16}, s[{SRD_WS}:{SRD_WS+3}], s{so} offen")
        A(f"s_add_u32 s{S_KS}, s{S_KS}, 1")
    for i in range(D):
        loads(i)
    for k in range(KS_PER_WAVE):
        buf = k % D
        b = FB + 16 * buf
        rem = min(D - 1, KS_PER_WAVE - 1 - k)
        A(f"s_waitcnt vmcnt({4*rem})")
        for mb in range(2):
            for nb in range(2):
                d = ACC + 16 * (2 * mb + nb)
                A(mfma32(d, b + 8 + 4 * nb, b + 4 * mb, d))
        if k + D < KS_PER_WAVE:
            loads(buf)
    A(f"s_mul_i32 s{S_T0}, s{S_W}, {WREG}")
    A(f"v_and_b32 v3, 31, v{V_L}")
    A(f"v_mul_u32_u24 v3, {PITCH}, v3")
    A(f"v_lshrrev_b32 v4, 5, v{V_L}")
    A(f"v_lshl_add_u32 v3, v4, 4, v3")
    A(f"v_add_u32 v3, s{S_T0}, v3")
    A.nop(8)
    for mb in range(2):
        for nb in range(2):
            d = ACC + 16 * (2 * mb + nb)
            for i in range(4):
                off = mb * 32 * PITCH + (nb * 32 + 8 * i) * 4
                A(f"ds_write_b128 v3, {v(d+4*i,4)} offset:{off}")
    A(f"v_lshrrev_b32 v5, 3, v0")
    A(f"v_and_b32 v6, 7, v0")
    A(f"v_mul_u32_u24 v7, {PITCH}, v5")
    A(f"v_lshl_add_u32 v7, v6, 5, v7")
    A(f"v_lshlrev_b32 v8, 10, v5")
    A(f"v_lshl_add_u32 v8, v6, 4, v8")
    A(f"s_lshl_b32 s{S_T0}, s{S_MT}, 16")
    A(f"s_lshl_b32 s{T1}, s{S_NT}, 7")
    A(f"s_add_u32 s{S_T0}, s{S_T0}, s{T1}")
    A(f"buffer_load_dwordx4 v[12:15], v8, s[{SRD_X}:{SRD_X+3}], s{S_T0} offen")
    A("s_waitcnt lgkmcnt(0)")
    A("s_barrier")
    for w in range(NW):
        o1 = w * WREG
        if o1 + 16 > 65535:
            if o1 - (0) >= 65536 and w == 4:
                A(f"v_add_u32 v7, {4*WREG}, v7")
            o1 -= 4 * WREG
        A(f"ds_read_b128 {v(ACC+8*w,4)}, v7 offset:{o1}")
        A(f"ds_read_b128 {v(ACC+8*w+4,4)}, v7 offset:{o1+16}")
    A("s_waitcnt vmcnt(0) lgkmcnt(0)")
    for w in range(1, NW):
        for i in range(4):
            A(f"v_pk_add_f32 {v(ACC+2*i,2)}, {v(ACC+2*i,2)}, {v(ACC+8*w+2*i,2)}")
    A(f"s_mov_b32 s{T2}, 0xffff0000")
    for i in range(4):
        A(f"v_lshlrev_b32 v16, 16, v{12+i}")
        A(f"v_and_b32 v17, s{T2}, v{12+i}")
        A(f"v_pk_add_f32 {v(ACC+2*i,2)}, {v(ACC+2*i,2)}, v[16:17]")
        A(f"v_cvt_pk_bf16_f32 v{20+i}, v{ACC+2*i}, v{ACC+2*i+1}")
    A(f"buffer_store_dwordx4 v[20:23], v8, s[{SRD_OUT}:{SRD_OUT+3}], s{S_T0} offen")
    A.label("L_k3_end")
    A("s_endpgm")
    return NAME, 64 * NW, LDS, kernel_desc(NAME, FB + 16 * D)
```

```python
QF   = 0x0000000
KF   = 0x0200000
VF   = 0x0400000
HF   = 0x0800000
WDF  = 0x1000000
WOF  = 0x1200000
OF   = 0x1400000
YF   = 0x1800000
WS_USED = 0x2000000
KARG = dict(x=0, wqkv=8, wo=16, bx=24, wg=32, wu=40, wd=48, out=56, dbg=64, ws=72)
CQ = 0.25 * 1.4426950408889634
```

```python
import sys, importlib
sys.path.insert(0, "gen")
from asmlib import *
import k1, k2, k3
HEADER = open("parallel_sum__softmax_full_mha__glu_gated_bilinear__prompt.s.ref").read().split("; Override launch")[0]
def build(mods):
    A = Asm()
    descs = []
    launches = []
    A('.amdgcn_target "amdgcn-amd-amdhsa--gfx950"')
    A(".text")
    for m in mods:
        name, block, lds, desc = m.gen(A)
        descs.append(desc)
        launches.append(f"; @launch kernel={name} grid=(256,1,1) block=({block},1,1) lds={lds}")
    body = A.text()
    txt = HEADER + "\n".join(launches) + "\n" + body + '.section .rodata,"a"\n' + "".join(".p2align 6\n" + d for d in descs)
    return txt
if __name__ == "__main__":
    out = sys.argv[1] if len(sys.argv) > 1 else "parallel_sum__softmax_full_mha__glu_gated_bilinear__prompt.s"
    open(out, "w").write(build([k1, k2, k3]))
    print("wrote", out)
```

```python
from asmlib import *
from layout import *
import struct, os
EXP = os.environ.get('EXP','')
from stamp import Stamper

def f32bits(x):
    return struct.unpack("<I", struct.pack("<f", x))[0]

NAME = "k1_proj_kernel"
LDS = 163840

S_X, S_WQKV, S_WO, S_WD, S_WG, S_WU, S_WS = 4, 6, 8, 10, 12, 14, 16
SRD_X, SRD_LD, SRD_WS = 20, 24, 28
P_LO, P_HI, P_REC, P_OFF, P_STRIDE = 32, 33, 34, 35, 36
A_CUR, A_STEP, A_H1 = 38, 39, 37
S_W, S_MB, S_RB, S_CG = 40, 41, 42, 43
S_CD, S_LDSC = 44, 46
S_J, S_RSLOT, S_DSLOT, S_W8K = 48, 49, 50, 51
S_SC = 52
S_E, S_CLS, S_IDX, S_T0, T1, T2 = 54, 55, 56, 57, 58, 59
R_LO, R_HI, R_REC, R_OFF, R_OUT = 60, 61, 62, 63, 64
S_MASK, S_ONES = 65, 66
S_SO = 67
V_L, VA0, VA1, VL0, VL1, VD, VROW, VCH, V_ST, V_STV = 1, 2, 3, 4, 5, 6, 7, 8, 10, 11
TMP = 16
WB = 32
ACCA, ACCB = 64, 96
X = 128

def prepare(A):
    A(f"s_lshr_b32 s{S_CLS}, s{S_E}, 5")
    A(f"s_and_b32 s{S_IDX}, s{S_E}, 31")
    A(f"s_lshl_b32 s{P_OFF}, s{S_IDX}, 7")
    A(f"s_cmp_eq_u32 s{S_CLS}, 1")
    A(f"s_cselect_b32 s{P_LO}, s{S_WG}, s{S_WQKV}")
    A(f"s_cselect_b32 s{P_HI}, s{S_WG+1}, s{S_WQKV+1}")
    A(f"s_cmp_eq_u32 s{S_CLS}, 2")
    A(f"s_cselect_b32 s{P_LO}, s{S_WU}, s{P_LO}")
    A(f"s_cselect_b32 s{P_HI}, s{S_WU+1}, s{P_HI}")
    A(f"s_cmp_eq_u32 s{S_CLS}, 0")
    A(f"s_cselect_b32 s{P_REC}, 0x180000, 0x1c0000" if False else f"s_mov_b32 s{P_REC}, 0x1c0000")
    A(f"s_cselect_b32 s{P_REC}, 0x180000, s{P_REC}")
    A(f"s_mov_b32 s{P_STRIDE}, 3584")
    A(f"s_cselect_b32 s{P_STRIDE}, 3072, s{P_STRIDE}")
    A(f"s_cmp_eq_u32 s{S_CLS}, 3")
    A(f"s_cselect_b32 s{P_LO}, s{R_LO}, s{P_LO}")
    A(f"s_cselect_b32 s{P_HI}, s{R_HI}, s{P_HI}")
    A(f"s_cselect_b32 s{P_REC}, s{R_REC}, s{P_REC}")
    A(f"s_cselect_b32 s{P_OFF}, s{R_OFF}, s{P_OFF}")
    A(f"s_cselect_b32 s{P_STRIDE}, 1024, s{P_STRIDE}")
    A(f"s_cmp_eq_u32 s{S_CLS}, 4")
    A(f"s_cselect_b32 s{P_REC}, 0, s{P_REC}")

def activate(A):
    A(f"s_mov_b32 s{SRD_LD}, s{P_LO}")
    A(f"s_and_b32 s{SRD_LD+1}, s{P_HI}, 0xffff")
    A(f"s_mov_b32 s{SRD_LD+2}, s{P_REC}")
    A(f"s_mov_b32 s{A_CUR}, s{P_OFF}")
    A(f"s_lshl_b32 s{A_STEP}, s{P_STRIDE}, 3")
    A(f"s_mul_i32 s{A_H1}, s{P_STRIDE}, 192")
    A(f"v_mad_u32_u24 v{VD}, v{VROW}, s{P_STRIDE}, v{VCH}")

def dma_one(A, first):
    if first:
        A(f"s_add_u32 m0, s{S_DSLOT}, s{S_W8K}")
        A("s_nop 0")
    else:
        A(f"s_addk_i32 m0, 0x400")
        A(f"s_add_u32 s{A_CUR}, s{A_CUR}, s{A_STEP}")
    A(f"buffer_load_dwordx4 v{VD}, s[{SRD_LD}:{SRD_LD+3}], s{A_CUR} offen lds")

def dma_finish(A):
    A(f"s_add_u32 s{A_CUR}, s{A_CUR}, s{A_STEP}")

def adv_slot(A, sreg):
    A(f"s_add_u32 s{sreg}, s{sreg}, 0x8000")
    A(f"s_cmp_eq_u32 s{sreg}, 0x28000")
    A(f"s_cselect_b32 s{sreg}, 0x8000, s{sreg}")

def rd(A, gs, tile):
    b = WB + 8 * (gs & 3) + 4 * tile
    off = (gs & 15) * 2048
    va = VA0 if tile == 0 else VA1
    A(f"ds_read_b64_tr_b16 {v(b,2)}, v{va} offset:{off}")
    A(f"ds_read_b64_tr_b16 {v(b+2,2)}, v{va} offset:{off+512}")

def chain_half(A, acc, transposed, half):
    for sidx in range(16):
        gs = 16 * half + sidx
        if sidx == 14:
            adv_slot(A, S_RSLOT)
            A(f"v_add_u32 v{VA0}, s{S_RSLOT}, v{VL0}")
            A(f"v_add_u32 v{VA1}, s{S_RSLOT}, v{VL1}")
        for tile in range(2):
            if 'nord' not in EXP: rd(A, gs + 2, tile)
            if 'nowait' not in EXP: A("s_waitcnt lgkmcnt(8)")
            w = WB + 8 * (gs & 3) + 4 * tile
            x = X + 4 * gs
            d = acc + 16 * tile
            c = "0" if gs == 0 else d
            A(mfma32(d, w, x, c) if transposed else mfma32(d, x, w, c))
        if sidx == 5:
            if 'novm' not in EXP: A("s_waitcnt vmcnt(8)")
            if 'nobar' not in EXP: A("s_barrier")
            if half == 0:
                A(f"s_add_u32 s{A_CUR}, s{A_CUR}, s{A_H1}")
            else:
                activate(A)
        if 6 <= sidx <= 13 and 'nodma' not in EXP:
            dma_one(A, sidx == 6)
        if sidx == 13:
            dma_finish(A)
            adv_slot(A, S_DSLOT)

def gen(A):
    kernel_header(A, NAME)
    A(f"s_cmp_ge_u32 s2, 256")
    A(f"s_cbranch_scc1 L_k1_exit")
    ST = Stamper(A, 0)
    ST.real(0); ST.stamp("start")
    A(f"s_load_dwordx4 s[4:7], s[0:1], 0")
    A(f"s_load_dwordx2 s[8:9], s[0:1], 16")
    A(f"s_load_dwordx2 s[10:11], s[0:1], 48")
    A(f"s_load_dwordx4 s[12:15], s[0:1], 32")
    A(f"s_load_dwordx2 s[16:17], s[0:1], 72")
    A(f"v_readfirstlane_b32 s{S_W}, v0")
    A(f"v_and_b32 v{V_L}, 63, v0")
    A("s_nop 1")
    A(f"s_lshr_b32 s{S_W}, s{S_W}, 6")
    A(f"s_and_b32 s{S_T0}, s2, 1")
    A(f"s_lshl_b32 s{S_T0}, s{S_T0}, 3")
    A(f"s_bfe_u32 s{T1}, s2, 0x30003")
    A(f"s_add_u32 s{S_RB}, s{S_T0}, s{T1}")
    A(f"s_bfe_u32 s{S_T0}, s2, 0x20001")
    A(f"s_lshl_b32 s{S_T0}, s{S_T0}, 2")
    A(f"s_lshr_b32 s{T1}, s2, 6")
    A(f"s_add_u32 s{S_CG}, s{S_T0}, s{T1}")
    A(f"s_lshl_b32 s{S_MB}, s{S_RB}, 2")
    A(f"s_add_u32 s{S_MB}, s{S_MB}, s{S_W}")
    A(f"s_lshl_b32 s{S_W8K}, s{S_W}, 13")
    A(f"v_lshrrev_b32 v12, 2, v{V_L}")
    A(f"v_lshrrev_b32 v13, 4, v{V_L}")
    A(f"v_xor_b32 v13, v13, v{V_L}")
    A(f"v_and_b32 v13, 3, v13")
    A(f"v_lshlrev_b32 v13, 4, v13")
    A(f"v_lshl_add_u32 v12, v12, 10, v13")
    A(f"v_lshrrev_b32 v{VROW}, 3, v{V_L}")
    A(f"v_lshrrev_b32 v13, 2, v{V_L}")
    A(f"v_and_b32 v13, 4, v13")
    A(f"v_and_b32 v14, 7, v{V_L}")
    A(f"v_xor_b32 v13, v13, v14")
    A(f"v_lshlrev_b32 v{VCH}, 4, v13")
    A(f"s_lshl_b32 s{S_T0}, s{S_W}, 6")
    A(f"v_add_u32 v{VROW}, s{S_T0}, v{VROW}")
    A("s_waitcnt lgkmcnt(0)")
    srd(A, SRD_X, S_X, 0x200000)
    srd(A, SRD_WS, S_WS, WS_USED)
    A(f"s_mov_b32 s{SRD_LD+3}, 0x20000")
    A(f"s_lshl_b32 s{S_SO}, s{S_MB}, 15")
    A(f"s_add_u32 s{S_T0}, s{S_W}, 1")
    A(f"s_lshl_b32 s{S_T0}, s{S_T0}, 15")
    A(f"s_mov_b32 m0, s{S_T0}")
    for rg in range(2):
        for kq in range(16):
            if not (rg == 0 and kq == 0):
                if kq == 0:
                    A(f"s_addk_i32 m0, {16384 - 15*960}")
                    A(f"s_add_u32 s{S_SO}, s{S_SO}, 16384")
                else:
                    A(f"s_addk_i32 m0, 960")
                    A("s_nop 0")
            else:
                A("s_nop 0")
            A(f"buffer_load_dwordx4 v12, s[{SRD_X}:{SRD_X+3}], s{S_SO} offen offset:{64*kq} lds")
    A(f"s_and_b32 s{S_T0}, s2, 7")
    A(f"s_lshl_b32 s{S_T0}, s{S_T0}, 7")
    A(f"s_lshr_b32 s{T1}, s2, 3")
    A(f"s_cmp_lt_u32 s2, 56")
    A(f"s_cselect_b32 s{R_LO}, s{S_WD}, s{S_WO}")
    A(f"s_cselect_b32 s{R_HI}, s{S_WD+1}, s{S_WO+1}")
    A(f"s_cselect_b32 s{R_REC}, 0x1c0000, 0x80000" if False else f"s_mov_b32 s{R_REC}, 0x80000")
    A(f"s_cselect_b32 s{R_REC}, 0x1c0000, s{R_REC}")
    A(f"s_cselect_b32 s{T2}, 0, 7")
    A(f"s_sub_u32 s{T1}, s{T1}, s{T2}")
    A(f"s_lshl_b32 s{R_OFF}, s{T1}, 18")
    A(f"s_add_u32 s{R_OFF}, s{R_OFF}, s{S_T0}")
    A(f"s_cmp_lt_u32 s2, 72")
    A(f"s_cselect_b32 s{R_REC}, s{R_REC}, 0")
    A(f"s_and_b32 s{S_T0}, s2, 7")
    A(f"s_lshl_b32 s{S_T0}, s{S_T0}, 1")
    A(f"s_cmp_lt_u32 s2, 56")
    A(f"s_cselect_b32 s{T2}, 112, 32")
    A(f"s_mul_i32 s{S_T0}, s{S_T0}, s{T2}")
    A(f"s_lshl_b32 s{T1}, s{T1}, 4")
    A(f"s_add_u32 s{S_T0}, s{S_T0}, s{T1}")
    A(f"s_lshl_b32 s{T1}, s{S_W}, 2")
    A(f"s_add_u32 s{S_T0}, s{S_T0}, s{T1}")
    A(f"s_lshl_b32 s{S_T0}, s{S_T0}, 10")
    A(f"s_cmp_lt_u32 s2, 56")
    A(f"s_mov_b32 s{T1}, {hex(WOF)}")
    A(f"s_cselect_b32 s{T1}, {hex(WDF)}, s{T1}")
    A(f"s_add_u32 s{R_OUT}, s{S_T0}, s{T1}")
    lab_b, lab_d = A.new_label("kindB"), A.new_label("descdone")
    A(f"s_cmp_ge_u32 s{S_CG}, 12")
    A(f"s_cbranch_scc1 {lab_b}")
    A(f"s_lshl_b32 s{S_T0}, s{S_CG}, 1")
    A(f"s_mul_i32 s{T1}, s{S_T0}, 0x01010100")
    A(f"s_add_u32 s{S_CD}, s{T1}, s{S_CG}")
    A(f"s_add_u32 s{S_CD}, s{S_CD}, {hex((0x20<<8)|(0x40<<16)|(0x21<<24))}")
    A(f"s_add_u32 s{S_CD+1}, s{S_T0}, {hex(0x41|(0x60<<8)|(0x80<<16))}")
    A(f"s_branch {lab_d}")
    A.label(lab_b)
    A(f"s_mul_i32 s{S_T0}, s{S_CG}, 3")
    A(f"s_sub_u32 s{S_T0}, s{S_T0}, 24")
    A(f"s_mul_i32 s{T1}, s{S_T0}, 0x010101")
    A(f"s_add_u32 s{T1}, s{T1}, 0x020100")
    A(f"s_add_u32 s{T2}, s{S_CG}, 12")
    A(f"s_lshl_b32 s{S_T0}, s{T2}, 24")
    A(f"s_add_u32 s{S_CD}, s{T1}, s{S_T0}")
    A(f"s_add_u32 s{S_CD}, s{S_CD}, 0x20000000")
    A(f"s_add_u32 s{S_CD+1}, s{T2}, {hex(0x40|(0x60<<8)|(0x80<<16))}")
    A.label(lab_d)
    A(f"s_mov_b32 s{S_LDSC}, s{S_CD}")
    A(f"s_mov_b32 s{S_LDSC+1}, s{S_CD+1}")
    A(f"s_and_b32 s{S_E}, s{S_LDSC}, 0xff")
    A(f"s_lshr_b64 s[{S_LDSC}:{S_LDSC+1}], s[{S_LDSC}:{S_LDSC+1}], 8")
    prepare(A)
    activate(A)
    A(f"s_mov_b32 s{S_DSLOT}, 0")
    for i in range(8):
        dma_one(A, i == 0)
    dma_finish(A)
    A(f"s_and_b32 s{S_E}, s{S_LDSC}, 0xff")
    A(f"s_lshr_b64 s[{S_LDSC}:{S_LDSC+1}], s[{S_LDSC}:{S_LDSC+1}], 8")
    prepare(A)
    A(f"v_lshrrev_b32 v13, 5, v{V_L}")
    A(f"v_lshlrev_b32 v{VL0}, 10, v13")
    A(f"v_bfe_u32 v13, v{V_L}, 2, 2")
    A(f"v_lshl_add_u32 v{VL0}, v13, 7, v{VL0}")
    A(f"v_lshrrev_b32 v13, 1, v13")
    A(f"v_lshl_add_u32 v{VL0}, v13, 6, v{VL0}")
    A(f"v_bfe_u32 v13, v{V_L}, 4, 1")
    A(f"v_lshl_add_u32 v{VL0}, v13, 5, v{VL0}")
    A(f"v_and_b32 v13, 3, v{V_L}")
    A(f"v_lshl_add_u32 v{VL0}, v13, 3, v{VL0}")
    A(f"v_xor_b32 v{VL1}, 64, v{VL0}")
    A(f"v_lshlrev_b32 v{V_ST}, 4, v{V_L}")
    A(f"v_bfe_u32 v13, v{V_L}, 4, 1")
    A(f"v_lshlrev_b32 v{V_STV}, 16, v13")
    A(f"v_lshrrev_b32 v13, 5, v{V_L}")
    A(f"v_lshl_add_u32 v{V_STV}, v13, 8, v{V_STV}")
    A(f"v_and_b32 v13, 15, v{V_L}")
    A(f"v_lshl_add_u32 v{V_STV}, v13, 4, v{V_STV}")
    A(f"v_bfe_u32 v13, v{V_L}, 4, 1")
    A(f"v_lshlrev_b32 v14, 14, v13")
    A(f"v_and_b32 v13, 15, v{V_L}")
    A(f"v_lshl_add_u32 v14, v13, 6, v14")
    A(f"v_lshrrev_b32 v13, 5, v{V_L}")
    A(f"v_bfe_u32 v15, v{V_L}, 2, 2")
    A(f"v_xor_b32 v13, v13, v15")
    A(f"v_lshl_add_u32 v14, v13, 4, v14")
    A(f"s_add_u32 s{S_T0}, s{S_W}, 1")
    A(f"s_lshl_b32 s{S_T0}, s{S_T0}, 15")
    A(f"v_add_u32 v14, s{S_T0}, v14")
    A(f"v_xor_b32 v15, 32, v14")
    A(f"s_mov_b32 s{S_MASK}, 0xffff0000")
    A(f"s_mov_b32 s{S_ONES}, 0x3f803f80")
    A("s_waitcnt vmcnt(8)")
    ST.stamp("x landed")
    for st in range(32):
        a = 14 if (st & 1) == 0 else 15
        A(f"ds_read_b128 {v(X+4*st,4)}, v{a} offset:{(st>>1)*1024}")
    A("s_waitcnt lgkmcnt(0)")
    A("s_barrier")
    A(f"s_mov_b32 s{S_DSLOT}, 0x8000")
    A(f"s_add_u32 s{A_CUR}, s{A_CUR}, s{A_H1}")
    for i in range(8):
        dma_one(A, i == 0)
    activate(A)
    A(f"s_mov_b32 s{S_DSLOT}, 0x10000")
    for i in range(8):
        dma_one(A, i == 0)
    dma_finish(A)
    A(f"s_mov_b32 s{S_DSLOT}, 0x18000")
    for r in range(16, 20):
        A(f"v_mov_b32 v{r}, 0")
    for i in range(128):
        A(f"v_dot2c_f32_bf16 v{16+(i&1)}, s{S_ONES}, v{X+i}")
        A(f"v_dot2c_f32_bf16 v{18+(i&1)}, v{X+i}, v{X+i}")
    A("s_nop 2")
    A("v_add_f32 v16, v16, v17")
    A("v_add_f32 v18, v18, v19")
    A("s_nop 0")
    A("v_mov_b32 v17, v16")
    A("v_mov_b32 v19, v18")
    A("s_nop 1")
    A("v_permlane32_swap_b32 v16, v17")
    A("v_permlane32_swap_b32 v18, v19")
    A("s_nop 1")
    A("v_add_f32 v16, v16, v17")
    A("v_add_f32 v18, v18, v19")
    A(f"s_mov_b32 s{S_T0}, {hex(f32bits(1.0/512))}")
    A(f"v_mul_f32 v16, s{S_T0}, v16")
    A(f"v_mul_f32 v18, s{S_T0}, v18")
    A(f"v_fma_f32 v18, -v16, v16, v18")
    A(f"v_max_f32 v18, 0, v18")
    A(f"v_add_f32 v18, {hex(f32bits(1e-5))}, v18")
    A(f"v_rsq_f32 v20, v18")
    A("s_nop 0")
    A(f"v_mul_f32 v22, v16, v20")
    A(f"v_sub_f32 v22, 0, v22")
    for i in range(128):
        t = 24 + 2 * (i & 3)
        A(f"v_lshlrev_b32 v{t}, 16, v{X+i}")
        A(f"v_and_b32 v{t+1}, s{S_MASK}, v{X+i}")
        if i > 0:
            tp = 24 + 2 * ((i - 1) & 3)
            A(f"v_cvt_pk_bf16_f32 v{X+i-1}, v{tp}, v{tp+1}")
        A(f"v_pk_fma_f32 {v(t,2)}, {v(t,2)}, v[20:21], v[22:23] op_sel_hi:[1,0,0]")
    tp = 24 + 2 * (127 & 3)
    A(f"v_cvt_pk_bf16_f32 v{X+127}, v{tp}, v{tp+1}")
    A("s_waitcnt vmcnt(16)")
    A("s_barrier")
    A(f"s_mov_b32 s{S_RSLOT}, 0")
    A(f"v_mov_b32 v{VA0}, v{VL0}")
    A(f"v_mov_b32 v{VA1}, v{VL1}")
    for gs in range(2):
        for tile in range(2):
            rd(A, gs, tile)
    A(f"s_mov_b32 s{S_J}, 0")
    ST.stamp("loop start")
    A.label("L_k1_job")
    A(f"s_and_b32 s{S_E}, s{S_LDSC}, 0xff")
    A(f"s_lshr_b64 s[{S_LDSC}:{S_LDSC+1}], s[{S_LDSC}:{S_LDSC+1}], 8")
    prepare(A)
    A(f"s_and_b32 s{S_E}, s{S_CD}, 0xff")
    A(f"s_lshr_b64 s[{S_CD}:{S_CD+1}], s[{S_CD}:{S_CD+1}], 8")
    A(f"s_lshr_b32 s{S_CLS}, s{S_E}, 5")
    A(f"s_and_b32 s{S_IDX}, s{S_E}, 31")
    A(f"s_cmp_eq_u32 s{S_CLS}, 2")
    A(f"s_cbranch_scc1 L_k1_chainU")
    A(f"s_cmp_ge_u32 s{S_E}, 16")
    A(f"s_cselect_b32 s{S_T0}, 1, 0")
    A(f"s_cmp_ge_u32 s{S_E}, 32")
    A(f"s_cselect_b32 s{S_T0}, 0, s{S_T0}")
    A(f"s_cmp_eq_u32 s{S_T0}, 1")
    A(f"s_cbranch_scc1 L_k1_chainV")
    chain_half(A, ACCA, True, 0)
    chain_half(A, ACCA, True, 1)
    A(f"s_cmp_eq_u32 s{S_CLS}, 1")
    A(f"s_cbranch_scc1 L_k1_next")
    A(f"s_cmp_lt_u32 s{S_IDX}, 8")
    A(f"s_mov_b32 s{S_SC}, 1.0")
    A(f"s_cselect_b32 s{S_SC}, {hex(f32bits(CQ))}, s{S_SC}")
    A(f"s_mov_b32 s{S_SC+1}, s{S_SC}")
    A(f"s_lshr_b32 s{S_T0}, s{S_IDX}, 3")
    A(f"s_lshl_b32 s{S_T0}, s{S_T0}, 21")
    A(f"s_and_b32 s{T1}, s{S_IDX}, 7")
    A(f"s_lshl_b32 s{T1}, s{T1}, 8")
    A(f"s_add_u32 s{T1}, s{T1}, s{S_MB}")
    A(f"s_lshl_b32 s{T1}, s{T1}, 10")
    A(f"s_add_u32 s{S_SO}, s{S_T0}, s{T1}")
    if QF: A(f"s_add_u32 s{S_SO}, s{S_SO}, {hex(QF)}")
    A.nop(6)
    for q in range(4):
        b = ACCA + 8 * q
        for u in range(4):
            A(f"v_pk_mul_f32 {v(b+2*u,2)}, {v(b+2*u,2)}, s[{S_SC}:{S_SC+1}]")
        for u in range(4):
            A(f"v_cvt_pk_bf16_f32 v{TMP+4*q+u}, v{b+2*u}, v{b+2*u+1}")
        A(f"buffer_store_dwordx4 {v(TMP+4*q,4)}, v{V_ST}, s[{SRD_WS}:{SRD_WS+3}], s{S_SO} offen")
        if q < 3:
            A(f"s_add_u32 s{S_SO}, s{S_SO}, 0x10000")
    A("s_branch L_k1_next")
    A.label("L_k1_chainV")
    chain_half(A, ACCA, False, 0)
    chain_half(A, ACCA, False, 1)
    A(f"s_and_b32 s{T1}, s{S_IDX}, 7")
    A(f"s_lshl_b32 s{T1}, s{T1}, 8")
    A(f"s_add_u32 s{T1}, s{T1}, s{S_MB}")
    A(f"s_lshl_b32 s{T1}, s{T1}, 10")
    A(f"s_add_u32 s{S_SO}, s{T1}, {hex(VF)}")
    A.nop(9)
    for T in range(2):
        for ab in range(2):
            q = 2 * T + ab
            b = ACCA + 8 * q
            for u in range(4):
                A(f"v_cvt_pk_bf16_f32 v{TMP+4*q+u}, v{b+2*u}, v{b+2*u+1}")
            A(f"buffer_store_dwordx4 {v(TMP+4*q,4)}, v{V_STV}, s[{SRD_WS}:{SRD_WS+3}], s{S_SO} offen offset:{512*ab}")
        if T == 0:
            A(f"s_add_u32 s{S_SO}, s{S_SO}, 0x20000")
    A("s_branch L_k1_next")
    A.label("L_k1_chainU")
    chain_half(A, ACCB, True, 0)
    chain_half(A, ACCB, True, 1)
    A(f"s_mul_i32 s{T1}, s{S_MB}, 112")
    A(f"s_lshl_b32 s{S_T0}, s{S_IDX}, 2")
    A(f"s_add_u32 s{T1}, s{T1}, s{S_T0}")
    A(f"s_lshl_b32 s{T1}, s{T1}, 10")
    A(f"s_add_u32 s{S_SO}, s{T1}, {hex(HF)}")
    A.nop(9)
    for q in range(4):
        a, b = ACCA + 8 * q, ACCB + 8 * q
        if q == 2:
            A.nop(1)
        for u in range(4):
            A(f"v_pk_mul_f32 {v(a+2*u,2)}, {v(a+2*u,2)}, {v(b+2*u,2)}")
        for u in range(4):
            A(f"v_cvt_pk_bf16_f32 v{TMP+4*q+u}, v{a+2*u}, v{a+2*u+1}")
        A(f"buffer_store_dwordx4 {v(TMP+4*q,4)}, v{V_ST}, s[{SRD_WS}:{SRD_WS+3}], s{S_SO} offen offset:{1024*q}")
    A.label("L_k1_next")
    ST.jobstamp(S_J, 5)
    A(f"s_add_u32 s{S_J}, s{S_J}, 1")
    A(f"s_cmp_lt_u32 s{S_J}, 5")
    A(f"s_cbranch_scc1 L_k1_job")
    A(f"s_cmp_ge_u32 s2, 72")
    A(f"s_cbranch_scc1 L_k1_end")
    A("s_waitcnt vmcnt(0) lgkmcnt(0)")
    A(f"v_lshrrev_b32 v13, 5, v{V_L}")
    A(f"v_lshlrev_b32 v13, 9, v13")
    A(f"v_sub_u32 v12, v{VL0}, v13")
    A(f"s_add_u32 s{S_T0}, s{S_W8K}, 0x10000")
    A(f"v_add_u32 v12, s{S_T0}, v12")
    A(f"v_xor_b32 v13, 64, v12")
    for un in range(4):
        for T in range(2):
            b = WB + 8 * un + 4 * T
            va = 12 + T
            A(f"ds_read_b64_tr_b16 {v(b,2)}, v{va} offset:{un*2048}")
            A(f"ds_read_b64_tr_b16 {v(b+2,2)}, v{va} offset:{un*2048+1024}")
    A(f"s_cmp_lt_u32 s2, 56")
    A(f"s_mov_b32 s{T1}, {32*1024}")
    A(f"s_cselect_b32 s{T1}, {112*1024}, s{T1}")
    A(f"s_add_u32 s{T1}, s{T1}, s{R_OUT}")
    A("s_waitcnt lgkmcnt(0)")
    for un in range(4):
        for T in range(2):
            b = WB + 8 * un + 4 * T
            so = R_OUT if T == 0 else T1
            A(f"buffer_store_dwordx4 {v(b,4)}, v{V_ST}, s[{SRD_WS}:{SRD_WS+3}], s{so} offen offset:{1024*un}")
    A.label("L_k1_end")
    ST.stamp("end"); ST.real(1); ST.flush(S_W)
    A.label("L_k1_exit")
    A("s_endpgm")
    return NAME, 256, LDS, kernel_desc(NAME, 256)
```

```python
from asmlib import *
from layout import *
import struct
from stamp import Stamper
def f32bits(x):
    return struct.unpack("<I", struct.pack("<f", x))[0]

NAME = "k2_attn_kernel"
LDS = 131072 + 1024
NW = 8
S_WS = 4
SRD_WS = 8
S_W, S_H, S_QB, S_SO = 12, 13, 14, 15
S_T0, T1, T2 = 16, 17, 18
S_VM = 20
S_IT = 22
S_B = 23
V_L, V_KA, V_VA, V_L16 = 1, 2, 3, 4
S0 = 8
P0 = 40
O = 56
C = 72
KB = 88
VB = 96
Q = 112
T = 116
RED = 131072
T_SAFE = 96.0

def kread(A, t, buf):
    A(f"ds_read_b128 {v(KB+4*buf,4)}, v{V_KA} offset:{t*1024}")
def vread(A, t, buf):
    A(f"s_mov_b64 exec, s[{S_VM}:{S_VM+1}]")
    A(f"ds_read_b128 {v(VB+8*buf,4)}, v{V_VA} offset:{t*1024}")
    A(f"ds_read_b128 {v(VB+8*buf+4,4)}, v{V_VA} offset:{t*1024+512}")
    A(f"s_mov_b64 exec, -1")

def cross_max32(A, r, t):
    for sh in ("row_ror:1", "row_ror:2", "row_ror:4", "row_ror:8"):
        A("s_nop 1")
        A(f"v_max_f32_dpp v{r}, v{r}, v{r} {sh} row_mask:0xf bank_mask:0xf")
    A("s_nop 1")
    A(f"v_mov_b32 v{t}, v{r}")
    A("s_nop 1")
    A(f"v_permlane16_swap_b32 v{r}, v{t}")
    A("s_nop 1")
    A(f"v_max_f32 v{r}, v{r}, v{t}")
    A("s_nop 0")
    A(f"v_mov_b32 v{t}, v{r}")
    A("s_nop 1")
    A(f"v_permlane32_swap_b32 v{r}, v{t}")
    A("s_nop 1")
    A(f"v_max_f32 v{r}, v{r}, v{t}")

def gen(A):
    kernel_header(A, NAME)
    A("s_cmp_ge_u32 s2, 256")
    A("s_cbranch_scc1 L_k2_exit")
    ST = Stamper(A, 1)
    ST.real(0); ST.stamp("start")
    A(f"s_load_dwordx2 s[{S_WS}:{S_WS+1}], s[0:1], 72")
    A(f"v_readfirstlane_b32 s{S_W}, v0")
    A(f"v_and_b32 v{V_L}, 63, v0")
    A("s_nop 1")
    A(f"s_lshr_b32 s{S_W}, s{S_W}, 6")
    A(f"s_and_b32 s{S_H}, s2, 31")
    A(f"s_lshr_b32 s{S_QB}, s2, 5")
    A(f"v_lshlrev_b32 v{V_L16}, 4, v{V_L}")
    A("s_waitcnt lgkmcnt(0)")
    srd(A, SRD_WS, S_WS, WS_USED)
    A(f"s_lshl_b32 s{S_T0}, s{S_H}, 16")
    A(f"s_lshl_b32 s{T1}, s{S_W}, 13")
    A(f"s_add_u32 s{S_SO}, s{S_T0}, s{T1}")
    A(f"s_add_u32 s{T2}, s{S_SO}, {hex(VF)}")
    A(f"s_add_u32 s{S_SO}, s{S_SO}, {hex(KF)}")
    A(f"s_mov_b32 m0, s{T1}")
    A("s_nop 0")
    for i in range(8):
        if i == 4:
            A(f"s_add_u32 s{S_SO}, s{S_SO}, 4096")
            A(f"s_addk_i32 m0, 4096")
            A("s_nop 0")
        A(f"buffer_load_dwordx4 v{V_L16}, s[{SRD_WS}:{SRD_WS+3}], s{S_SO} offen offset:{1024*(i&3)} lds")
    A(f"s_lshl_b32 s{S_SO}, s{S_QB}, 3")
    A(f"s_add_u32 s{S_SO}, s{S_SO}, s{S_W}")
    A(f"s_lshl_b32 s{S_SO}, s{S_SO}, 10")
    A(f"s_add_u32 s{S_SO}, s{S_SO}, s{S_T0}")
    if QF: A(f"s_add_u32 s{S_SO}, s{S_SO}, {hex(QF)}")
    A(f"buffer_load_dwordx4 {v(Q,4)}, v{V_L16}, s[{SRD_WS}:{SRD_WS+3}], s{S_SO} offen")
    A(f"s_add_u32 m0, s{T1}, 0x10000")
    A("s_nop 0")
    for i in range(8):
        if i == 4:
            A(f"s_add_u32 s{T2}, s{T2}, 4096")
            A(f"s_addk_i32 m0, 4096")
            A("s_nop 0")
        A(f"buffer_load_dwordx4 v{V_L16}, s[{SRD_WS}:{SRD_WS+3}], s{T2} offen offset:{1024*(i&3)} lds")
    A(f"v_mov_b32 v{V_KA}, v{V_L16}")
    A(f"v_lshrrev_b32 v{T}, 5, v{V_L}")
    A(f"v_lshlrev_b32 v{V_VA}, 8, v{T}")
    A(f"v_and_b32 v{T}, 15, v{V_L}")
    A(f"v_lshl_add_u32 v{V_VA}, v{T}, 4, v{V_VA}")
    A(f"v_add_u32 v{V_VA}, 0x10000, v{V_VA}")
    A(f"s_mov_b32 s{S_VM}, 0xffff")
    A(f"s_mov_b32 s{S_VM+1}, 0xffff")
    for i in range(16):
        A(f"v_mov_b32 v{VB+i}, 0x3f803f80")
        A(f"v_mov_b32 v{O+i}, 0")
    ST.stamp("issued")
    A("s_waitcnt vmcnt(8)")
    A("s_barrier")
    ST.stamp("K landed")
    A(f"s_lshl_b32 s{T1}, s{S_W}, 13")
    A(f"v_add_u32 v{T}, s{T1}, v{V_L16}")
    for i in range(8):
        A(f"ds_read_b128 {v(S0+4*i,4)}, v{T} offset:{1024*i}")
    A(f"v_mov_b32 v{T+1}, 0")
    for u in range(4):
        A(f"v_dot2c_f32_bf16 v{T+1}, v{Q+u}, v{Q+u}")
    for i in range(8):
        A(f"v_mov_b32 v{P0+i}, 0")
    A("s_waitcnt lgkmcnt(0)")
    for u in range(4):
        for i in range(8):
            A(f"v_dot2c_f32_bf16 v{P0+i}, v{S0+4*i+u}, v{S0+4*i+u}")
    A("s_nop 2")
    for i in range(8):
        A(f"v_mov_b32 v{P0+8+i}, v{P0+i}")
    A(f"v_mov_b32 v{T+2}, v{T+1}")
    A("s_nop 1")
    for i in range(8):
        A(f"v_permlane32_swap_b32 v{P0+i}, v{P0+8+i}")
    A(f"v_permlane32_swap_b32 v{T+1}, v{T+2}")
    A("s_nop 1")
    for i in range(8):
        A(f"v_add_f32 v{P0+i}, v{P0+i}, v{P0+8+i}")
    A(f"v_add_f32 v{T+1}, v{T+1}, v{T+2}")
    A(f"v_max3_f32 v{P0}, v{P0}, v{P0+1}, v{P0+2}")
    A(f"v_max3_f32 v{P0+3}, v{P0+3}, v{P0+4}, v{P0+5}")
    A(f"v_max3_f32 v{P0}, v{P0}, v{P0+6}, v{P0+7}")
    A(f"v_max_f32 v{P0}, v{P0}, v{P0+3}")
    cross_max32(A, P0, T + 3)
    cross_max32(A, T + 1, T + 3)
    A(f"s_lshl_b32 s{T1}, s{S_W}, 2")
    A(f"s_add_u32 s{T1}, s{T1}, {RED}")
    A(f"v_mov_b32 v{T+3}, s{T1}")
    A(f"ds_write_b32 v{T+3}, v{P0}")
    ST.stamp("norm")
    A("s_waitcnt vmcnt(0) lgkmcnt(0)")
    A("s_barrier")
    ST.stamp("V landed")
    A(f"v_mov_b32 v{T+3}, {RED}")
    A(f"ds_read_b128 {v(P0,4)}, v{T+3}")
    A(f"ds_read_b128 {v(P0+4,4)}, v{T+3} offset:16")
    kread(A, 0, 0)
    kread(A, 1, 1)
    A("s_waitcnt lgkmcnt(2)")
    A(f"v_max3_f32 v{P0}, v{P0}, v{P0+1}, v{P0+2}")
    A(f"v_max3_f32 v{P0+3}, v{P0+3}, v{P0+4}, v{P0+5}")
    A(f"v_max3_f32 v{P0}, v{P0}, v{P0+6}, v{P0+7}")
    A(f"v_max_f32 v{P0}, v{P0}, v{P0+3}")
    A(f"v_mul_f32 v{P0}, v{P0}, v{T+1}")
    A(f"v_sqrt_f32 v{P0}, v{P0}")
    A("s_nop 0")
    A(f"v_mul_f32 v{P0}, {hex(f32bits(1.02))}, v{P0}")
    A("s_nop 0")
    A(f"v_readfirstlane_b32 s{S_B}, v{P0}")
    A(f"v_sub_f32 v{P0}, 0, v{P0}")
    for i in range(16):
        A(f"v_mov_b32 v{C+i}, v{P0}")
    A(f"s_cmp_le_u32 s{S_B}, {hex(f32bits(T_SAFE/2))}")
    A("s_cbranch_scc1 L_k2_main")
    A("s_waitcnt lgkmcnt(0)")
    A(f"v_mov_b32 v{T+2}, 0xff800000")
    A(f"v_mov_b32 v{T+4}, v{V_L16}")
    A(f"s_mov_b32 s{S_IT}, 64")
    A.label("L_k2_pre")
    A(f"ds_read_b128 {v(P0,4)}, v{T+4}")
    A(f"v_add_u32 v{T+4}, 1024, v{T+4}")
    A("s_waitcnt lgkmcnt(0)")
    A(mfma32(S0, P0, Q, "0"))
    A.nop(14)
    for i in range(8):
        A(f"v_max3_f32 v{T+2}, v{T+2}, v{S0+2*i}, v{S0+2*i+1}")
    A(f"s_sub_u32 s{S_IT}, s{S_IT}, 1")
    A(f"s_cmp_lg_u32 s{S_IT}, 0")
    A("s_cbranch_scc1 L_k2_pre")
    A(f"v_mov_b32 v{T+3}, v{T+2}")
    A("s_nop 1")
    A(f"v_permlane32_swap_b32 v{T+2}, v{T+3}")
    A("s_nop 1")
    A(f"v_max_f32 v{T+2}, v{T+2}, v{T+3}")
    A(f"v_sub_f32 v{T+2}, 0, v{T+2}")
    for i in range(16):
        A(f"v_mov_b32 v{C+i}, v{T+2}")
    A.label("L_k2_main")
    A("s_waitcnt lgkmcnt(0)")
    A("s_nop 1")
    A(mfma32(S0, KB, Q, C))
    for i in range(8):
        A(f"v_mov_b32 v{P0+8+i}, 0")
    A.nop(6)
    ST.stamp("loop start")
    UN = 8
    A(f"s_mov_b32 s{S_IT}, {64//UN}")
    A(".p2align 6")
    A.label("L_k2_loop")
    for t in range(UN):
        cur, nxt = t & 1, 1 - (t & 1)
        Sc, Sn = S0 + 16 * cur, S0 + 16 * nxt
        Pc, Pn = P0 + 8 * cur, P0 + 8 * nxt
        ex = [f"v_exp_f32 v{Sc+i}, v{Sc+i}" for i in range(16)]
        cv = [f"v_cvt_pk_bf16_f32 v{Pc+i}, v{Sc+2*i}, v{Sc+2*i+1}" for i in range(8)]
        A("s_waitcnt lgkmcnt(1)")
        A(mfma32(O, VB + 8 * nxt, Pn, O))
        for e in ex[0:4]: A(e)
        A(mfma32(O, VB + 8 * nxt + 4, Pn + 4, O))
        vread(A, t, cur)
        for e in ex[4:8]: A(e)
        for e in cv[0:2]: A(e)
        A("s_waitcnt lgkmcnt(2)")
        A(mfma32(Sn, KB + 4 * nxt, Q, C))
        kread(A, t + 2, cur)
        for e in ex[8:12]: A(e)
        for e in cv[2:4]: A(e)
        for e in ex[12:16]: A(e)
        for e in cv[4:6]: A(e)
        A("s_nop 0")
        for e in cv[6:8]: A(e)
    A(f"v_add_u32 v{V_KA}, {UN*1024}, v{V_KA}")
    A(f"v_add_u32 v{V_VA}, {UN*1024}, v{V_VA}")
    A(f"s_sub_u32 s{S_IT}, s{S_IT}, 1")
    A(f"s_cmp_lg_u32 s{S_IT}, 0")
    A("s_cbranch_scc1 L_k2_loop")
    ST.stamp("loop end")
    A("s_waitcnt lgkmcnt(0)")
    A(mfma32(O, VB + 8, P0 + 8, O))
    A(mfma32(O, VB + 12, P0 + 12, O))
    A(f"s_lshl_b32 s{S_SO}, s{S_QB}, 3")
    A(f"s_add_u32 s{S_SO}, s{S_SO}, s{S_W}")
    A(f"s_lshl_b32 s{S_SO}, s{S_SO}, 5")
    A(f"s_add_u32 s{S_SO}, s{S_SO}, s{S_H}")
    A(f"s_lshl_b32 s{S_SO}, s{S_SO}, 10")
    A(f"s_add_u32 s{S_SO}, s{S_SO}, {hex(OF)}")
    A.nop(10)
    A(f"v_rcp_f32 v{T}, v{O+8}")
    A("s_nop 0")
    for i in range(8):
        A(f"v_mul_f32 v{O+i}, v{O+i}, v{T}")
    for u in range(4):
        A(f"v_cvt_pk_bf16_f32 v{T+4+u}, v{O+2*u}, v{O+2*u+1}")
    A(f"buffer_store_dwordx4 {v(T+4,4)}, v{V_L16}, s[{SRD_WS}:{SRD_WS+3}], s{S_SO} offen")
    ST.stamp("end"); ST.real(1); ST.flush(S_W)
    A.label("L_k2_exit")
    A("s_endpgm")
    return NAME, 64 * NW, LDS, kernel_desc(NAME, 128)
```

```python
from asmlib import *
from layout import *
from stamp import Stamper

NAME = "k3_out_kernel"
NW = 8
PITCH = 272
WREG = 64 * PITCH
LDS = NW * WREG
S_X, S_OUT, S_WS = 4, 6, 8
SRD_WS, SRD_X, SRD_OUT = 12, 16, 20
S_W, S_MT, S_NT = 24, 25, 26
S_A0, S_A1, S_B0, S_B1 = 28, 29, 30, 31
S_T0, T1, T2, S_IT = 32, 33, 34, 35
V_L, V_L16 = 1, 2
ACC = 64
FB = 128
D = 6
KS_PER_WAVE = 18

def gen(A):
    kernel_header(A, NAME)
    A("s_cmp_ge_u32 s2, 256")
    A("s_cbranch_scc1 L_k3_exit")
    ST = Stamper(A, 2)
    ST.real(0); ST.stamp("start")
    import os
    for i in range(int(os.environ.get("PADK3","0"))):
        A(f"v_fma_f32 v{10+(i&15)}, v0, v0, v0")
    A(f"s_load_dwordx2 s[{S_X}:{S_X+1}], s[0:1], 0")
    A(f"s_load_dwordx2 s[{S_OUT}:{S_OUT+1}], s[0:1], 56")
    A(f"s_load_dwordx2 s[{S_WS}:{S_WS+1}], s[0:1], 72")
    A(f"v_readfirstlane_b32 s{S_W}, v0")
    A(f"v_and_b32 v{V_L}, 63, v0")
    A("s_nop 1")
    A(f"s_lshr_b32 s{S_W}, s{S_W}, 6")
    A(f"s_and_b32 s{S_T0}, s2, 7")
    A(f"s_lshl_b32 s{S_T0}, s{S_T0}, 2")
    A(f"s_bfe_u32 s{T1}, s2, 0x20003")
    A(f"s_add_u32 s{S_MT}, s{S_T0}, s{T1}")
    A(f"s_lshr_b32 s{S_NT}, s2, 5")
    A(f"v_lshlrev_b32 v{V_L16}, 4, v{V_L}")
    A("s_waitcnt lgkmcnt(0)")
    srd(A, SRD_WS, S_WS, WS_USED)
    srd(A, SRD_X, S_X, 0x200000)
    srd(A, SRD_OUT, S_OUT, 0x200000)
    for i in range(64):
        A(f"v_mov_b32 v{ACC+i}, 0")
    def set_offsets(ksreg):
        lab_h, lab_e = A.new_label("ksh"), A.new_label("kse")
        A(f"s_cmp_ge_u32 s{ksreg}, 32")
        A(f"s_cbranch_scc1 {lab_h}")
        A(f"s_lshl_b32 s{S_T0}, s{S_MT}, 6")
        A(f"s_add_u32 s{S_T0}, s{S_T0}, s{ksreg}")
        A(f"s_lshl_b32 s{S_T0}, s{S_T0}, 10")
        A(f"s_add_u32 s{S_A0}, s{S_T0}, {hex(OF)}")
        A(f"s_add_u32 s{S_A1}, s{S_A0}, {32*1024}")
        A(f"s_lshl_b32 s{S_T0}, s{S_NT}, 6")
        A(f"s_add_u32 s{S_T0}, s{S_T0}, s{ksreg}")
        A(f"s_lshl_b32 s{S_T0}, s{S_T0}, 10")
        A(f"s_add_u32 s{S_B0}, s{S_T0}, {hex(WOF)}")
        A(f"s_add_u32 s{S_B1}, s{S_B0}, {32*1024}")
        A(f"s_branch {lab_e}")
        A.label(lab_h)
        A(f"s_sub_u32 s{T1}, s{ksreg}, 32")
        A(f"s_mul_i32 s{S_T0}, s{S_MT}, 224")
        A(f"s_add_u32 s{S_T0}, s{S_T0}, s{T1}")
        A(f"s_lshl_b32 s{S_T0}, s{S_T0}, 10")
        A(f"s_add_u32 s{S_A0}, s{S_T0}, {hex(HF)}")
        A(f"s_add_u32 s{S_A1}, s{S_A0}, {112*1024}")
        A(f"s_mul_i32 s{S_T0}, s{S_NT}, 224")
        A(f"s_add_u32 s{S_T0}, s{S_T0}, s{T1}")
        A(f"s_lshl_b32 s{S_T0}, s{S_T0}, 10")
        A(f"s_add_u32 s{S_B0}, s{S_T0}, {hex(WDF)}")
        A(f"s_add_u32 s{S_B1}, s{S_B0}, {112*1024}")
        A.label(lab_e)
    S_KS = 36
    A(f"s_mul_i32 s{S_KS}, s{S_W}, {KS_PER_WAVE}")
    def loads(buf):
        set_offsets(S_KS)
        b = FB + 16 * buf
        for i, so in enumerate((S_A0, S_A1, S_B0, S_B1)):
            A(f"buffer_load_dwordx4 {v(b+4*i,4)}, v{V_L16}, s[{SRD_WS}:{SRD_WS+3}], s{so} offen")
        A(f"s_add_u32 s{S_KS}, s{S_KS}, 1")
    for i in range(D):
        loads(i)
    ST.stamp("issued")
    for k in range(KS_PER_WAVE):
        if k == 1: ST.stamp("first landed")
        buf = k % D
        b = FB + 16 * buf
        rem = min(D - 1, KS_PER_WAVE - 1 - k)
        A(f"s_waitcnt vmcnt({4*rem})")
        for mb in range(2):
            for nb in range(2):
                d = ACC + 16 * (2 * mb + nb)
                A(mfma32(d, b + 8 + 4 * nb, b + 4 * mb, d))
        if k + D < KS_PER_WAVE:
            loads(buf)
    ST.stamp("mfma done")
    A(f"s_mul_i32 s{S_T0}, s{S_W}, {WREG}")
    A(f"v_and_b32 v3, 31, v{V_L}")
    A(f"v_mul_u32_u24 v3, {PITCH}, v3")
    A(f"v_lshrrev_b32 v4, 5, v{V_L}")
    A(f"v_lshl_add_u32 v3, v4, 4, v3")
    A(f"v_add_u32 v3, s{S_T0}, v3")
    A.nop(8)
    for mb in range(2):
        for nb in range(2):
            d = ACC + 16 * (2 * mb + nb)
            for i in range(4):
                off = mb * 32 * PITCH + (nb * 32 + 8 * i) * 4
                A(f"ds_write_b128 v3, {v(d+4*i,4)} offset:{off}")
    A(f"v_lshrrev_b32 v5, 3, v0")
    A(f"v_and_b32 v6, 7, v0")
    A(f"v_mul_u32_u24 v7, {PITCH}, v5")
    A(f"v_lshl_add_u32 v7, v6, 5, v7")
    A(f"v_lshlrev_b32 v8, 10, v5")
    A(f"v_lshl_add_u32 v8, v6, 4, v8")
    A(f"s_lshl_b32 s{S_T0}, s{S_MT}, 16")
    A(f"s_lshl_b32 s{T1}, s{S_NT}, 7")
    A(f"s_add_u32 s{S_T0}, s{S_T0}, s{T1}")
    A(f"buffer_load_dwordx4 v[12:15], v8, s[{SRD_X}:{SRD_X+3}], s{S_T0} offen")
    A("s_waitcnt lgkmcnt(0)")
    A("s_barrier")
    ST.stamp("barrier")
    for w in range(NW):
        o1 = w * WREG
        if o1 + 16 > 65535:
            if o1 - (0) >= 65536 and w == 4:
                A(f"v_add_u32 v7, {4*WREG}, v7")
            o1 -= 4 * WREG
        A(f"ds_read_b128 {v(ACC+8*w,4)}, v7 offset:{o1}")
        A(f"ds_read_b128 {v(ACC+8*w+4,4)}, v7 offset:{o1+16}")
    A("s_waitcnt vmcnt(0) lgkmcnt(0)")
    for w in range(1, NW):
        for i in range(4):
            A(f"v_pk_add_f32 {v(ACC+2*i,2)}, {v(ACC+2*i,2)}, {v(ACC+8*w+2*i,2)}")
    A(f"s_mov_b32 s{T2}, 0xffff0000")
    for i in range(4):
        A(f"v_lshlrev_b32 v16, 16, v{12+i}")
        A(f"v_and_b32 v17, s{T2}, v{12+i}")
        A(f"v_pk_add_f32 {v(ACC+2*i,2)}, {v(ACC+2*i,2)}, v[16:17]")
        A(f"v_cvt_pk_bf16_f32 v{20+i}, v{ACC+2*i}, v{ACC+2*i+1}")
    A(f"buffer_store_dwordx4 v[20:23], v8, s[{SRD_OUT}:{SRD_OUT+3}], s{S_T0} offen")
    ST.stamp("end"); ST.real(1); ST.flush(S_W)
    A.label("L_k3_exit")
    A("s_endpgm")
    return NAME, 64 * NW, LDS, kernel_desc(NAME, FB + 16 * D)
```

```python
import os
from layout import *
ENABLED = os.environ.get("STAMP", "0") == "1"
STAMP_BASE = 0x3000000
class Stamper:
    def __init__(self, A, kidx, base_sgpr=76, nmax=10):
        self.A, self.kidx, self.base, self.n, self.nmax = A, kidx, base_sgpr, 0, nmax
    def stamp(self, name=""):
        if not ENABLED: return
        A = self.A
        assert self.n < self.nmax
        r = self.base + 2 * self.n
        A(f"s_memtime s[{r}:{r+1}]")
        self.n += 1
    def jobstamp(self, jreg, n):
        if not ENABLED: return
        A = self.A
        A("s_memtime s[100:101]")
        A("s_waitcnt lgkmcnt(0)")
        for j in range(n):
            r = self.base + 2 * (self.n + j)
            A(f"s_cmp_eq_u32 s{jreg}, {j}")
            A(f"s_cselect_b32 s{r}, s100, s{r}")
        self.n += n
    def real(self, which):
        if not ENABLED: return
        r = 96 + 2 * which
        self.A(f"s_memrealtime s[{r}:{r+1}]")
    def flush(self, wave_sgpr):
        if not ENABLED: return
        A = self.A
        A("s_waitcnt vmcnt(0) lgkmcnt(0)")
        A("s_load_dwordx2 s[70:71], s[0:1], 72")
        A("s_waitcnt lgkmcnt(0)")
        A("s_mov_b32 s72, s70")
        A("s_and_b32 s73, s71, 0xffff")
        A("s_mov_b32 s74, 0x8000000")
        A("s_mov_b32 s75, 0x20000")
        A(f"s_lshl_b32 s70, s2, 4")
        A(f"s_add_u32 s70, s70, s{wave_sgpr}")
        A(f"s_lshl_b32 s70, s70, 6")
        A(f"s_add_u32 s70, s70, {hex(STAMP_BASE + self.kidx * 0x100000)}")
        A("v_mov_b32 v0, 0")
        for i in range(self.n):
            A(f"v_mov_b32 v1, s{self.base + 2*i}")
            A(f"buffer_store_dword v1, v0, s[72:75], s70 offen offset:{4*i}")
            A("s_nop 1")
        for w in range(2):
            A(f"v_mov_b32 v1, s{96+2*w}")
            A(f"buffer_store_dword v1, v0, s[72:75], s70 offen offset:{4*(12+w)}")
            A("s_nop 1")
            A(f"v_mov_b32 v1, s{97+2*w}")
            A(f"buffer_store_dword v1, v0, s[72:75], s70 offen offset:{4*(14+w)}")
            A("s_nop 1")
```
